```python
import torch

def _softmax(x, axis=-1):
    return torch.softmax(x, dim=axis)
def _gelu(x):
    return torch.nn.functional.gelu(x, approximate="tanh")
def _silu(x):
    return torch.nn.functional.silu(x)
def _sigmoid(x):
    return torch.sigmoid(x)
def _layernorm(x, axis=-1, eps=1e-5):
    m = x.mean(dim=axis, keepdim=True)
    v = x.var(dim=axis, keepdim=True, unbiased=False)
    return (x - m) / torch.sqrt(v + eps)
def _scatter_add(tgt, idx, src, axis=0):
    return tgt.clone().index_add_(axis, idx, src)
def _segment_sum(src, seg, n):
    out = torch.zeros((n,) + src.shape[1:], dtype=src.dtype)
    return out.index_add_(0, seg, src)
def _pad(x, pw):
    flat = tuple(v for pair in reversed(pw) for v in pair)
    return torch.nn.functional.pad(x, flat)

kernel_name = 'sequential_preLN__linear_attn_block__dense_activation_gelu__prompt'

def setup_inputs():

    _w = (lambda a: (lambda t: t.to(torch.bfloat16) if t.is_floating_point() else t)(torch.as_tensor(a)))
    def _A_setup():
        B, S, D = 1, 2048, 512
        return {
            "x": _w((lambda *s: torch.randn(*s, dtype=torch.bfloat16) * 0.05)(B, S, D)),
            "wqkv": _w((lambda *s: torch.randn(*s, dtype=torch.bfloat16) * 0.05)(D, 3 * D)),
            "wo": _w((lambda *s: torch.randn(*s, dtype=torch.bfloat16) * 0.05)(D, D)),
        }
    _A_in = _A_setup()

    def _B_setup():
        B, S, D, F = 1, 2048, 512, 1376
        return {
            "x": _w((lambda *s: torch.randn(*s, dtype=torch.bfloat16) * 0.05)(B, S, D)),
            "w1": _w((lambda *s: torch.randn(*s, dtype=torch.bfloat16) * 0.8)(D, F) * (D ** -0.5)),
            "b1": _w((lambda *s: torch.randn(*s, dtype=torch.bfloat16) * 12.8)(F) * 0.01),
            "w2": _w((lambda *s: torch.randn(*s, dtype=torch.bfloat16) * 0.2)(F, D) * (F ** -0.5)),
            "b2": _w((lambda *s: torch.randn(*s, dtype=torch.bfloat16) * 3.2)(D) * 0.01),
        }
    _B_in = _B_setup()

    return {
        "A_x": _A_in["x"],
        "A_wqkv": _A_in["wqkv"],
        "A_wo": _A_in["wo"],
        "B_x": _B_in["x"],
        "B_w1": _B_in["w1"],
        "B_b1": _B_in["b1"],
        "B_w2": _B_in["w2"],
        "B_b2": _B_in["b2"],
    }

def reference(A_x, A_wqkv, A_wo, B_x, B_w1, B_b1, B_w2, B_b2):
    def _A_ref(x, wqkv, wo):
        B, S, D = x.shape
        H = 32; Dh = D // H
        qkv = (lambda x, *d: x.permute(*d))((x @ wqkv).reshape(B, S, 3, H, Dh), 2, 0, 3, 1, 4)
        q, k, v = qkv[0], qkv[1], qkv[2]
        phi = lambda t: torch.where(t > 0, t + 1, torch.exp(t)) + 1e-6
        pq, pk = phi(q), phi(k)
        kv = torch.einsum("bhsd,bhse->bhde", pk, v)
        z = torch.einsum("bhsd->bhd", pk)
        num = torch.einsum("bhqd,bhde->bhqe", pq, kv)
        den = torch.einsum("bhqd,bhd->bhq", pq, z)[..., None] + 1e-6
        o = num / den
        return (lambda x, *d: x.permute(*d))(o, 0, 2, 1, 3).reshape(B, S, D) @ wo

    def _B_ref(x, w1, b1, w2, b2):
        h = torch.einsum("bsd,df->bsf", x, w1) + b1
        h = _gelu(h)
        return torch.einsum("bsf,fd->bsd", h, w2) + b2

    x = A_x
    h = x + _A_ref(_layernorm(x, axis=-1), A_wqkv, A_wo)
    h2 = h + _B_ref(_layernorm(h, axis=-1), B_w1, B_b1, B_w2, B_b2)
    return h2
```

```python
import re

REG_RE = re.compile(r'\b([vas])\[(\d+):(\d+)\]|\b([vas])(\d+)\b|\b(vcc|exec|m0|scc|exec_lo|exec_hi|vcc_lo|vcc_hi)\b')
TRANS = ('v_exp_f32', 'v_log_f32', 'v_rcp_f32', 'v_rsq_f32', 'v_sqrt_f32', 'v_sin_f32', 'v_cos_f32')


def regs_of(opnd):
    out = []
    for m in REG_RE.finditer(opnd):
        if m.group(1):
            out += [(m.group(1), i) for i in range(int(m.group(2)), int(m.group(3)) + 1)]
        elif m.group(4):
            out.append((m.group(4), int(m.group(5))))
        else:
            n = m.group(6)
            out.append(('x', 'exec' if n.startswith('exec') else 'vcc' if n.startswith('vcc') else n))
    return out


def split_ops(rest):
    ops, depth, cur = [], 0, ''
    for ch in rest:
        if ch in '[(':
            depth += 1
        if ch in '])':
            depth -= 1
        if ch == ',' and depth == 0:
            ops.append(cur.strip())
            cur = ''
        else:
            cur += ch
    if cur.strip():
        ops.append(cur.strip())
    return ops


class I:
    __slots__ = ('text', 'op', 'kind', 'rd', 'wr', 'srcC', 'passes', 'wide', 'sdata', 'toks', 'lds_dma', 'dpp', 'note')

    def __init__(self, text, kind=None):
        self.text = text
        self.rd, self.wr, self.srcC, self.sdata = set(), set(), set(), set()
        self.passes, self.wide, self.lds_dma, self.dpp = 0, False, False, False
        self.toks = None
        self.note = None
        if kind is not None:
            self.kind, self.op = kind, kind
            return
        t = text.split(';')[0].strip()
        sp = t.split(None, 1)
        op = sp[0]
        for suf in ('_e32', '_e64', '_dpp', '_sdwa'):
            if op.endswith(suf):
                if suf == '_dpp':
                    self.dpp = True
                op = op[:-len(suf)]
        self.op = op
        ops = split_ops(sp[1]) if len(sp) > 1 else []
        R = [regs_of(o) for o in ops]
        allr = lambda rs: set(x for r in rs for x in r)
        if op.startswith('v_mfma'):
            self.kind = 'mfma'
            self.passes = 8 if '32x32' in op else 4
            self.wr = set(R[0])
            self.rd = allr(R[1:])
            self.srcC = set(R[3])
        elif op.startswith('buffer_') or op.startswith('global_'):
            self.kind = 'vmem'
            if re.search(r'\blds\b', t) and 'load' in op:
                self.lds_dma = True
                self.rd = allr(R) | {('x', 'm0')}
            elif 'load' in op:
                self.wr = set(R[0])
                self.rd = allr(R[1:])
            else:
                self.rd = allr(R)
                self.sdata = set(R[0] if op.startswith('buffer_') else R[1])
                self.wide = op.endswith('x4') or op.endswith('x3')
                if 'atomic' in op and re.search(r'\bsc0\b', t):
                    self.wr = set(R[0])
        elif op.startswith('ds_'):
            self.kind = 'ds'
            if 'read' in op or 'permute' in op or 'swizzle' in op:
                self.wr = set(R[0])
                self.rd = allr(R[1:])
            else:
                self.rd = allr(R)
        elif op.startswith('s_load') or op.startswith('s_buffer_load') or op in ('s_memtime', 's_memrealtime'):
            self.kind = 'smem'
            self.wr = set(R[0])
            self.rd = allr(R[1:])
        elif op == 's_waitcnt':
            self.kind = 'rawwait'
        elif op == 's_nop':
            self.kind = 'nop'
        elif op in ('s_barrier', 's_endpgm', 's_setprio', 's_sleep'):
            self.kind = 'misc'
        elif op.startswith('s_cbranch') or op == 's_branch' or op == 's_setpc_b64':
            self.kind = 'branch'
            self.rd = allr(R)
            if 'vcc' in op:
                self.rd.add(('x', 'vcc'))
        elif op.startswith('s_cmp') or op.startswith('s_bitcmp'):
            self.kind = 'salu'
            self.rd = allr(R)
        elif op.startswith('s_'):
            self.kind = 'salu'
            self.wr = set(R[0])
            self.rd = allr(R[1:])
            if 'saveexec' in op:
                self.wr.add(('x', 'exec'))
        elif op.startswith('v_'):
            self.kind = 'trans' if op in TRANS else 'valu'
            self.wr = set(R[0])
            self.rd = allr(R[1:])
            if op.startswith('v_permlane') and 'swap' in op:
                self.wr = allr(R)
                self.rd = allr(R)
            if op in ('v_fmac_f32', 'v_dot2c_f32_bf16', 'v_pk_fmac_f16') or self.dpp:
                self.rd |= set(R[0])
            if op in ('v_add_co_u32', 'v_addc_co_u32', 'v_sub_co_u32', 'v_subb_co_u32'):
                self.wr |= set(R[1])
                self.rd = allr(R[2:])
        else:
            raise ValueError('unknown instr ' + text)


class Seq(list):
    def i(self, text):
        last = None
        for line in text.split('\n'):
            line = line.strip()
            if not line or line.startswith(';'):
                continue
            if line.endswith(':') or line.startswith('.'):
                last = I(line, 'label')
            else:
                last = I(line)
            self.append(last)
        return last

    def wait(self, *toks):
        flat = []
        for t in toks:
            if isinstance(t, (list, tuple)):
                flat += list(t)
            elif t is not None:
                flat.append(t)
        w = I('', 'symwait')
        w.toks = flat
        self.append(w)

    def opt_begin(self):
        self.append(I('', 'optb'))

    def opt_end(self):
        self.append(I('', 'opte'))

    def comment(self, s):
        self.append(I('; ' + s, 'label'))


def interleave(main, fill, ratio=None, start=0):
    idx = [k for k, x in enumerate(main) if x.kind == 'mfma']
    idx = idx[start:]
    out = Seq()
    n = len(idx)
    pos = {}
    for q, k in enumerate(idx):
        pos[k] = (len(fill) * (q + 1)) // n if ratio is None else min(len(fill), int(ratio * (q + 1)))
    done = 0
    for k, x in enumerate(main):
        out.append(x)
        if k in pos:
            while done < pos[k]:
                out.append(fill[done])
                done += 1
    out.extend(fill[done:])
    return out


def resolve_waits(seq):
    out = []
    vmq, dsq = [], []
    smem_pending = set()
    stack = []

    def emit_wait(vm=None, lg=None):
        nonlocal vmq, dsq
        parts = []
        if vm is not None:
            n = min(vm, 62)
            parts.append('vmcnt(%d)' % n)
            vmq = vmq[len(vmq) - n:] if n else []
        if lg is not None:
            n = min(lg, 14)
            parts.append('lgkmcnt(%d)' % n)
            dsq = dsq[len(dsq) - n:] if n else []
            if n == 0:
                smem_pending.clear()
        if parts:
            out.append(I('s_waitcnt ' + ' '.join(parts)))

    def need(q, pred):
        k = None
        for n, x in enumerate(q):
            if pred(x):
                k = n
        return None if k is None else len(q) - 1 - k

    for x in seq:
        if x.kind == 'optb':
            stack.append((list(vmq), list(dsq)))
            continue
        if x.kind == 'opte':
            v0, d0 = stack.pop()
            for y in vmq + dsq:
                if y not in v0 and y not in d0:
                    assert not y.wr and not y.lds_dma, 'load still pending at end of optional section: ' + y.text
            vmq, dsq = v0, d0
            continue
        if x.kind == 'symwait':
            ids = set(id(t) for t in x.toks)
            emit_wait(need(vmq, lambda y: id(y) in ids), need(dsq, lambda y: id(y) in ids))
            continue
        if x.kind == 'rawwait':
            m = re.search(r'vmcnt\((\d+)\)', x.text)
            if m:
                n = int(m.group(1))
                vmq = vmq[max(0, len(vmq) - n):] if n else []
            m = re.search(r'lgkmcnt\((\d+)\)', x.text)
            if m:
                n = int(m.group(1))
                dsq = dsq[max(0, len(dsq) - n):] if n else []
                if n == 0:
                    smem_pending.clear()
            out.append(x)
            continue
        touched = x.rd | x.wr
        if touched:
            vm = need(vmq, lambda y: y.wr & touched)
            lg = need(dsq, lambda y: y.wr & touched)
            if smem_pending & touched:
                lg = 0
            if smem_pending and lg is not None:
                lg = 0
            emit_wait(vm, lg)
        out.append(x)
        if x.kind == 'vmem':
            vmq.append(x)
            assert len(vmq) <= 63 or True
        elif x.kind == 'ds':
            dsq.append(x)
        elif x.kind == 'smem':
            smem_pending |= x.wr
    return out


def hazard_states(p, c):
    need = 0
    isvalu = lambda z: z.kind in ('valu', 'trans')
    vec = lambda s: set(r for r in s if r[0] in 'va')
    sca = lambda s: set(r for r in s if r[0] == 's' or r == ('x', 'vcc'))
    if isvalu(p):
        raw = vec(p.wr) & c.rd
        if raw:
            if c.kind == 'mfma':
                need = max(need, 2)
            if c.op.startswith('v_permlane') or c.dpp:
                need = max(need, 2)
            if c.op in ('v_readfirstlane_b32', 'v_readlane_b32'):
                need = max(need, 1)
            if p.kind == 'trans' and c.kind != 'trans':
                need = max(need, 1)
        if p.op.startswith('v_dot') and vec(p.wr) & (c.rd | c.wr):
            if c.op != p.op:
                need = max(need, 3)
        sraw = sca(p.wr) & c.rd
        if sraw:
            if isvalu(c):
                need = max(need, 4 if c.op in ('v_readlane_b32', 'v_writelane_b32') else 2)
            if c.kind == 'vmem':
                need = max(need, 5)
            if c.kind in ('salu', 'branch', 'smem'):
                need = max(need, 1)
    if p.kind == 'mfma':
        big = p.passes == 8
        if c.kind == 'mfma':
            ab = c.rd - c.srcC
            if p.wr & ab:
                need = max(need, 12 if big else 8)
            if p.wr & c.srcC and not (p.wr == c.srcC and p.passes == c.passes):
                need = max(need, 10 if big else 6)
            if p.wr & c.wr and not (p.wr == c.srcC and p.passes == c.passes):
                need = max(need, 10 if big else 6)
        elif isvalu(c) or c.kind in ('vmem', 'ds'):
            if p.wr & (c.rd | c.wr):
                need = max(need, 12 if big else 8)
            if p.srcC & c.wr:
                need = max(need, 7 if big else 3)
    if p.kind == 'salu' and ('x', 'm0') in p.wr and c.lds_dma:
        need = max(need, 1)
    if p.kind == 'vmem' and p.wide and p.sdata & c.wr:
        need = max(need, 2)
    return need


def insert_nops(seq):
    out = []
    hist = []
    nn = 0
    for x in seq:
        if x.kind == 'label':
            out.append(x)
            continue
        need = 0
        dist = 0
        for p in reversed(hist):
            h = hazard_states(p[0], x)
            if h - dist > need:
                need = h - dist
            dist += p[1]
            if dist >= 12:
                break
        if need > 0:
            nn += need
            out.append(I('s_nop %d' % (need - 1)))
            hist.append((out[-1], need))
        out.append(x)
        st = 1
        if x.kind == 'nop':
            st = int(x.text.split()[1], 0) + 1
        hist.append((x, st))
        hist = hist[-14:]
    return out, nn


def finalize(seq):
    s = resolve_waits(seq)
    s, nn = insert_nops(s)
    lines = []
    for x in s:
        lines.append(x.text if x.kind == 'label' else '  ' + x.text)
    return '\n'.join(lines) + '\n', nn
```

```python
import sys, struct, math
from asmlib import Seq, I, interleave, finalize

NAME = "sequential_preLN__linear_attn_block__dense_activation_gelu__prompt"
KN = NAME + "_kernel"


def f2u(x):
    return struct.unpack('<I', struct.pack('<f', x))[0]


WS_FLAG = 0x1000
WS_KVF = 0x8000
WS_ZF = 0x10000
WS_STAMP = 0x18000
WS_ZP = 0x20000
WS_KVP = 0x100000
WS_PQ = 0x200000
WS_H = 0x400000
WS_H1 = 0x600000
WS_SIZE = 0x1000000

LDS_A, LDS_B, LDS_C = 0, 65536, 131072
RING = LDS_B
KVL = LDS_C
STATS = 160768

SX, SWQ, SWO, SW1, SB1, SW2, SB2, SOUT, SWS = 4, 8, 12, 16, 20, 24, 28, 32, 36
sTAG, sXCD, sJ, sRB, sWV, sTT, sKH = 42, 43, 44, 45, 46, 47, 48
sT0, sT1, sT2, sT3 = 49, 50, 51, 52
sXB, sLW, sCNT = 53, 54, 55
sK0 = 56
sM1, sM2, sM3 = 58, 60, 62
sC0 = 64
sEPS, sLOG2E, sG0, sG1, sONE = 64, 66, 68, 70, 72
sSEL0, sSEL1, sSEL2, sSEL3, sMASK = 74, 75, 76, 77, 78
sFL = 79
sLW3 = 80
sSTAMP = 82


def srd(s):
    return f"s[{s}:{s+3}]"


def v(n, w=1):
    return f"v{n}" if w == 1 else f"v[{n}:{n+w-1}]"


def a(n, w=1):
    return f"a{n}" if w == 1 else f"a[{n}:{n+w-1}]"


def sp(n):
    return f"s[{n}:{n+1}]"


class Gen:
    def __init__(self, stamp=False, LA=4, MID=9):
        self.S = Seq()
        self.stamp_on = stamp
        self.nstamp = 0
        self.LA, self.MID = LA, MID
        self.lab = 0

    def stamp(self, S=None):
        if self.stamp_on:
            (S if S is not None else self.S).i(f"s_memtime {sp(sSTAMP + 2 * self.nstamp)}")
            self.nstamp += 1
            assert self.nstamp <= 10

    def label(self, p):
        self.lab += 1
        return f"L_{p}{self.lab}"

    def poll_flags(self, phase, vaddr, vtmp):
        S = self.S
        l, o = self.label("poll"), self.label("pollo")
        S.i(f"s_add_u32 s{sT0}, s{sFL}, {phase * 0x1000}\ns_mov_b32 s{sCNT}, 0")
        S.i(f"{l}:")
        S.i(f"buffer_load_dword {v(vtmp)}, {v(vaddr)}, {srd(SWS)}, s{sT0} offen sc1")
        S.i(f"s_add_u32 s{sCNT}, s{sCNT}, 1\ns_waitcnt vmcnt(0)")
        S.i(f"v_cmp_ne_u32 vcc, s{sTAG}, {v(vtmp)}")
        S.i(f"s_cmp_gt_u32 s{sCNT}, 0x40000\ns_cbranch_scc1 {o}\ns_cbranch_vccnz {l}\n{o}:")

    def set_flag(self, phase, vaddr, vtag):
        S = self.S
        l = self.label("nf")
        S.i(f"s_add_u32 s{sT0}, s{sFL}, {phase * 0x1000}")
        S.i(f"s_cmp_lg_u32 s{sWV}, 0\ns_cbranch_scc1 {l}")
        S.opt_begin()
        S.i(f"s_mov_b64 exec, 1\nbuffer_store_dword {v(vtag)}, {v(vaddr)}, {srd(SWS)}, s{sT0} offen sc1\ns_mov_b64 exec, -1")
        S.opt_end()
        S.i(f"{l}:")

    def build(self):
        S = self.S
        LA, MID = self.LA, self.MID
        vL, vL16, vXG, vWG, vWO, vW1G, vONES = 1, 2, 3, 4, 5, 6, 8
        vTAG, vFLS, vFLP, vT = 12, 13, 14, 15
        vHPK = 16
        vXR = 24
        vA0 = 32
        V0 = 48

        S.i(f"s_cmp_ge_u32 s2, 256\ns_cbranch_scc1 L_end")
        for s, off in ((SX, 0), (SWQ, 8), (SWS, 80), (SWO, 16), (SW1, 32), (SB1, 40), (SW2, 48), (SB2, 56), (SOUT, 64)):
            S.i(f"s_load_dwordx2 {sp(s)}, s[0:1], {off}")
        self.stamp()
        S.i(f"s_getpc_b64 {sp(sM1)}\nL_pc:")
        S.i(f"s_lshr_b32 s{sT0}, s2, 3")
        S.i(f"s_lshl_b32 s{sT1}, s{sT0}, 11")
        S.i(f"v_lshl_add_u32 {v(vT)}, v0, 7, s{sT1}")
        S.i(f"v_min_u32 {v(vT)}, L_code_end-L_pc-4, {v(vT)}")
        S.i(f"v_cmp_gt_u32 vcc, 16, v0\ns_and_saveexec_b64 {sp(sM2)}, vcc\ns_cbranch_execz L_nopf")
        S.opt_begin()
        pf = S.i(f"global_load_dword {v(255)}, {v(vT)}, {sp(sM1)}")
        pf.wr = set()
        S.opt_end()
        S.i(f"L_nopf:\ns_mov_b64 exec, -1")
        S.i(f"v_lshrrev_b32 {v(vT)}, 6, v0\nv_and_b32 {v(vL)}, 63, v0")
        S.i(f"v_readfirstlane_b32 s{sWV}, {v(vT)}")
        S.i(f"s_and_b32 s{sXCD}, s2, 7\ns_and_b32 s{sJ}, s{sT0}, 7\ns_lshr_b32 s{sT0}, s{sT0}, 3")
        S.i(f"s_lshl_b32 s{sRB}, s{sXCD}, 2\ns_add_u32 s{sRB}, s{sRB}, s{sT0}")
        for s, sz in ((SX, 2097152), (SWQ, 1572864), (SWS, WS_SIZE), (SWO, 524288), (SW1, 1409024), (SB1, 2752), (SW2, 1409024), (SB2, 1024), (SOUT, 2097152)):
            S.i(f"s_mov_b32 s{s+2}, {sz}\ns_mov_b32 s{s+3}, 0x20000")
        S.i(f"s_and_b32 s{sTT}, s{sWV}, 1\ns_lshr_b32 s{sKH}, s{sWV}, 1")
        S.i(f"s_lshl_b32 s{sLW}, s{sWV}, 10\ns_mul_i32 s{sLW3}, s{sWV}, 3072")
        S.i(f"s_lshl_b32 s{sXB}, s{sRB}, 16")
        S.i(f"s_lshl_b32 s{sK0}, s{sXCD}, 1")
        t0, t1, t2, t3 = V0, V0 + 1, V0 + 2, V0 + 3
        S.i(f"v_lshrrev_b32 {v(t0)}, 3, {v(vL)}\nv_lshrrev_b32 {v(t1)}, 4, {v(vL)}\nv_and_b32 {v(t2)}, 7, {v(vL)}")
        S.i(f"s_lshl_b32 s{sT0}, s{sTT}, 2\ns_lshl_b32 s{sT1}, s{sWV}, 13")
        S.i(f"v_or_b32 {v(t3)}, s{sT0}, {v(t1)}\nv_xor_b32 {v(t3)}, {v(t3)}, {v(t2)}")
        S.i(f"v_lshl_add_u32 {v(vXG)}, {v(t3)}, 4, s{sT1}\nv_lshl_add_u32 {v(vXG)}, {v(t0)}, 10, {v(vXG)}")
        S.i(f"v_and_b32 {v(t3)}, 1, {v(t1)}\nv_lshlrev_b32 {v(t3)}, 1, {v(t3)}\nv_or_b32 {v(t3)}, s{sT0}, {v(t3)}\nv_xor_b32 {v(t3)}, {v(t3)}, {v(t2)}")
        S.i(f"s_lshl_b32 s{sT2}, s{sJ}, 7\ns_lshl_b32 s{sT1}, s{sLW3}, 3\ns_add_u32 s{sT1}, s{sT1}, s{sT2}")
        S.i(f"v_lshl_add_u32 {v(vWG)}, {v(t3)}, 4, s{sT1}\nv_mul_u32_u24 {v(t3)}, 3072, {v(t0)}\nv_add_u32 {v(vWG)}, {v(vWG)}, {v(t3)}")

        def dma_x(Q, n):
            toks = []
            Q.i(f"s_add_u32 s{sT0}, s{sJ}, {n}\ns_and_b32 s{sT0}, s{sT0}, 7")
            Q.i(f"s_add_u32 s{sT1}, s{sT0}, s{sXCD}\ns_and_b32 s{sT1}, s{sT1}, 7\ns_lshl_b32 s{sT1}, s{sT1}, 7\ns_add_u32 s{sT1}, s{sT1}, s{sXB}")
            Q.i(f"s_lshl_b32 s{sT0}, s{sT0}, 13\ns_add_u32 m0, s{sT0}, s{sLW}")
            toks.append(Q.i(f"buffer_load_dwordx4 {v(vXG)}, {srd(SX)}, s{sT1} offen lds"))
            Q.i(f"s_add_u32 s{sT1}, s{sT1}, 32768\ns_add_u32 m0, m0, 4096")
            toks.append(Q.i(f"buffer_load_dwordx4 {v(vXG)}, {srd(SX)}, s{sT1} offen lds"))
            return toks

        slot = lambda s: (s + 5) % 7

        def dma_w(Q, s):
            Q.i(f"s_add_u32 s{sT0}, s{sK0}, {s}\ns_and_b32 s{sT0}, s{sT0}, 15\ns_mul_i32 s{sT0}, s{sT0}, {32*3072}")
            Q.i(f"s_add_u32 m0, s{sLW3}, {RING + slot(s) * 12288}")
            return [Q.i(f"buffer_load_dwordx4 {v(vWG)}, {srd(SWQ)}, s{sT0} offen offset:{p*1024} lds") for p in range(3)]

        def dma_wo(Q, n):
            Q.i(f"s_lshl_b32 s{sT0}, s{sWV}, 13\ns_add_u32 s{sT0}, s{sT0}, {n*32768}\ns_add_u32 m0, s{sLW}, {LDS_B + n*4096}")
            return [Q.i(f"buffer_load_dwordx4 {v(vWO)}, {srd(SWO)}, s{sT0} offen lds")]

        def dma_w1(Q, s):
            Q.i(f"s_mov_b32 s{sT0}, {s*32*2752}\ns_add_u32 m0, s{sLW3}, {LDS_A + (s % 5) * 12288}")
            toks = [Q.i(f"buffer_load_dwordx4 {v(vW1G)}, {srd(SW1)}, s{sT0} offen lds")]
            for p in (1, 2):
                Q.i(f"s_add_u32 s{sT0}, s{sT0}, 128\ns_add_u32 m0, m0, 1024")
                toks.append(Q.i(f"buffer_load_dwordx4 {v(vW1G+1)}, {srd(SW1)}, s{sT0} offen lds"))
            return toks

        def w2loc(n):
            if n < 16:
                return LDS_A + n * 2048, 32768
            if n < 23:
                return LDS_C + (n - 16) * 2048, 14336
            if n < 39:
                return LDS_B + (n - 23) * 2048, 32768
            return LDS_A + (n - 39) * 2048, 32768

        sW2G, sW2A, sW2C = 57, 40, 41

        def dma_w2(Q, n):
            base, st = w2loc(n)
            Q.i(f"s_add_u32 s{sT0}, s{sW2G}, {n*16384}\ns_add_u32 m0, s{sW2A if st == 32768 else sW2C}, {base}")
            return [Q.i(f"buffer_load_dwordx4 {v(vWO)}, {srd(SW2)}, s{sT0} offen lds")]

        S.i("s_waitcnt lgkmcnt(0)")
        xt = dma_x(S, 0)
        wt = {0: dma_w(S, 0)}
        S.i(f"s_load_dword s{sTAG}, {sp(SWS)}, 0")
        for n in range(1, 8):
            xt += dma_x(S, n)
        vXA0, vXA1, vWA0, vWA1, vXS0, vXS1 = vA0, vA0 + 1, vA0 + 2, vA0 + 3, vA0 + 4, vA0 + 5
        vSTW, vSTR, vSTL = vA0 + 6, vA0 + 7, vA0 + 8
        l15, g4, r4, l3 = V0 + 4, V0 + 5, V0 + 6, V0 + 7
        S.i(f"v_lshlrev_b32 {v(vL16)}, 4, {v(vL)}")
        S.i(f"v_and_b32 {v(l15)}, 15, {v(vL)}\nv_lshrrev_b32 {v(g4)}, 4, {v(vL)}\nv_bfe_u32 {v(r4)}, {v(vL)}, 2, 2\nv_and_b32 {v(l3)}, 3, {v(vL)}")
        S.i(f"v_lshrrev_b32 {v(t3)}, 1, {v(l15)}\nv_xor_b32 {v(t3)}, {v(t3)}, {v(g4)}\nv_lshlrev_b32 {v(t3)}, 4, {v(t3)}")
        S.i(f"v_lshl_add_u32 {v(vXA0)}, {v(l15)}, 7, {v(t3)}\nv_xor_b32 {v(vXA1)}, 64, {v(vXA0)}")
        S.i(f"s_lshl_b32 s{sT2}, s{sWV}, 11\nv_add_u32 {v(vXS0)}, s{sT2}, {v(vXA0)}\nv_add_u32 {v(vXS1)}, s{sT2}, {v(vXA1)}")
        S.i(f"v_and_b32 {v(t3)}, 1, {v(g4)}\nv_lshlrev_b32 {v(t3)}, 1, {v(t3)}\nv_lshrrev_b32 {v(t1)}, 1, {v(r4)}\nv_or_b32 {v(t3)}, {v(t3)}, {v(t1)}")
        S.i(f"v_xor_b32 {v(t3)}, s{sWV}, {v(t3)}\nv_lshlrev_b32 {v(t3)}, 5, {v(t3)}\nv_lshl_add_u32 {v(t3)}, {v(l3)}, 3, {v(t3)}")
        S.i(f"v_lshl_add_u32 {v(t3)}, {v(r4)}, 7, {v(t3)}\nv_mul_u32_u24 {v(t1)}, 3072, {v(g4)}\nv_add_u32 {v(t3)}, {v(t3)}, {v(t1)}")
        S.i(f"v_add_u32 {v(vWA0)}, {RING}, {v(t3)}\nv_add_u32 {v(vWA1)}, {RING + 49152}, {v(t3)}")
        S.i(f"s_lshl_b32 s{sT2}, s{sWV}, 6\ns_add_u32 s{sT2}, s{sT2}, {STATS}")
        S.i(f"v_lshl_add_u32 {v(vSTW)}, {v(l15)}, 2, s{sT2}")
        S.i(f"v_lshlrev_b32 {v(vSTR)}, 4, {v(g4)}\nv_add_u32 {v(vSTR)}, {STATS}, {v(vSTR)}")
        S.i(f"v_lshlrev_b32 {v(vSTL)}, 2, {v(l15)}\nv_add_u32 {v(vSTL)}, {STATS}, {v(vSTL)}")
        S.i(f"v_and_b32 {v(t3)}, 2, {v(t0)}\nv_lshlrev_b32 {v(t3)}, 1, {v(t3)}\nv_xor_b32 {v(t3)}, {v(t3)}, {v(t2)}")
        S.i(f"s_lshl_b32 s{sT2}, s{sJ}, 7\nv_lshl_add_u32 {v(vWO)}, {v(t3)}, 4, s{sT2}\nv_lshl_add_u32 {v(vWO)}, {v(t0)}, 10, {v(vWO)}")
        S.i(f"v_lshrrev_b32 {v(t3)}, 1, {v(t0)}\nv_lshlrev_b32 {v(t3)}, 1, {v(t3)}\nv_xor_b32 {v(t3)}, {v(t3)}, {v(t2)}")
        S.i(f"v_and_b32 {v(t1)}, 1, {v(t0)}\nv_lshlrev_b32 {v(t1)}, 2, {v(t1)}\nv_sub_u32 {v(t3)}, {v(t3)}, {v(t1)}")
        S.i(f"s_mul_i32 s{sT2}, s{sJ}, 384\ns_mul_i32 s{sT3}, s{sWV}, {8*2752}\ns_add_u32 s{sT2}, s{sT2}, s{sT3}")
        S.i(f"v_mul_u32_u24 {v(t1)}, 2752, {v(t0)}\nv_add_u32 {v(t1)}, s{sT2}, {v(t1)}")
        wt[1] = dma_w(S, 1)
        S.i(f"v_lshl_add_u32 {v(vW1G+1)}, {v(t3)}, 4, {v(t1)}")
        S.i(f"v_cmp_gt_i32 vcc, 0, {v(t3)}\nv_add_u32 {v(t1)}, 384, {v(vW1G+1)}")
        S.i(f"v_cndmask_b32 {v(vW1G)}, {v(vW1G+1)}, {v(t1)}, vcc")
        for k in range(4):
            S.i(f"v_mov_b32 {v(vONES+k)}, 0x3f803f80")
        for s, val in ((sEPS, 1e-6), (sLOG2E, math.log2(math.e)), (sONE, 1.0)):
            S.i(f"s_mov_b32 s{s}, {f2u(val):#x}\ns_mov_b32 s{s+1}, {f2u(val):#x}")
        c0 = -2.0 * math.sqrt(2.0 / math.pi) * math.log2(math.e)
        for s, val in ((sG0, c0), (sG1, c0 * 0.044715)):
            S.i(f"s_mov_b32 s{s}, {f2u(val):#x}\ns_mov_b32 s{s+1}, {f2u(val):#x}")
        for s, val in ((sM1, 0x22222222), (sM2, 0x44444444), (sM3, 0x88888888)):
            S.i(f"s_mov_b32 s{s}, {val:#x}\ns_mov_b32 s{s+1}, {val:#x}")
        S.i(f"s_mov_b32 s{sSEL0}, 0x0c0c0400\ns_mov_b32 s{sSEL1}, 0x04000c0c\ns_mov_b32 s{sSEL2}, 0x05040100\ns_mov_b32 s{sSEL3}, 0x07060302\ns_mov_b32 s{sMASK}, 0xffffff00")
        S.i(f"s_lshl_b32 s{sFL}, s{sRB}, 7\ns_add_u32 s{sFL}, s{sFL}, {WS_FLAG}")
        S.i(f"s_lshl_b32 s{sT2}, s{sJ}, 2\nv_mov_b32 {v(vFLS)}, s{sT2}\nv_lshlrev_b32 {v(vFLP)}, 2, {v(t2)}")
        S.i(f"s_mul_i32 s{sW2G}, s{sKH}, {43*16384}\ns_lshl_b32 s{sT2}, s{sTT}, 13\ns_add_u32 s{sW2G}, s{sW2G}, s{sT2}")
        S.i(f"s_lshl_b32 s{sT2}, s{sTT}, 10\ns_lshl_b32 s{sW2A}, s{sKH}, 15\ns_add_u32 s{sW2A}, s{sW2A}, s{sT2}")
        S.i(f"s_mul_i32 s{sW2C}, s{sKH}, 14336\ns_add_u32 s{sW2C}, s{sW2C}, s{sT2}")
        wt[2] = dma_w(S, 2)

        aK, aV, aQ = V0 + 8, V0 + 24, V0 + 40
        cK, cV, cQ = V0 + 56, V0 + 60, V0 + 64
        XF = [V0 + 68, V0 + 84]
        WF = [V0 + 100, V0 + 112]
        SF = V0 + 124
        S1, S2 = V0 + 188, V0 + 192
        S.wait(xt)
        S.i("s_barrier")
        self.stamp()
        for s in range(16):
            S.i(f"ds_read_b128 {v(SF+4*s,4)}, {v(vXS1 if s & 1 else vXS0)} offset:{(s >> 1) * 8192}")
        M = Seq()
        for s in range(16):
            c1 = "0" if s == 0 else v(S1, 4)
            c2 = "0" if s == 0 else v(S2, 4)
            M.i(f"v_mfma_f32_16x16x32_bf16 {v(S1,4)}, {v(vONES,4)}, {v(SF+4*s,4)}, {c1}")
            M.i(f"v_mfma_f32_16x16x32_bf16 {v(S2,4)}, {v(SF+4*s,4)}, {v(SF+4*s,4)}, {c2}")
        F = Seq()
        for s in range(3, LA):
            wt[s] = dma_w(F, s)

        def rd_x(Q, s):
            for t in range(4):
                Q.i(f"ds_read_b128 {v(XF[s&1]+4*t,4)}, {v(vXA1 if s & 1 else vXA0)} offset:{(s >> 1) * 8192 + t * 2048}")

        def rd_w(Q, s):
            sl = slot(s)
            base, off = (vWA0, sl * 12288) if sl < 4 else (vWA1, (sl - 4) * 12288)
            for p in (1, 2, 0):
                for rd in range(2):
                    Q.i(f"ds_read_b64_tr_b16 {v(WF[s&1]+4*p+2*rd,2)}, {v(base)} offset:{off + p*1024 + rd*512}")

        rd_x(F, 0)
        rd_w(F, 0)
        S.extend(interleave(M, F, start=8))
        self.ln_finalize(S, S1, S2, V0, diag=True)
        S.i(f"s_mov_b32 exec_lo, 0x00f0000f\ns_mov_b32 exec_hi, 0xf0000f00")
        stw = S.i(f"ds_write2_b32 {v(vSTW)}, {v(V0)}, {v(V0+1)} offset0:0 offset1:64")
        S.i("s_mov_b64 exec, -1")
        S.i(f"s_mul_i32 s{sTAG}, s{sTAG}, 0x19660d\ns_add_u32 s{sTAG}, s{sTAG}, 0x3c6ef35f")
        S.i(f"v_mov_b32 {v(vTAG)}, s{sTAG}")

        wot = []
        for s in range(16):
            b = s & 1
            M = Seq()
            z = (lambda r: "0") if s == 0 else (lambda r: v(r, 4))
            wq, wk, wv_ = v(WF[b], 4), v(WF[b] + 4, 4), v(WF[b] + 8, 4)
            for t in range(4):
                x = v(XF[b] + 4 * t, 4)
                M.i(f"v_mfma_f32_16x16x32_bf16 {v(aK+4*t,4)}, {x}, {wk}, {z(aK+4*t)}")
                M.i(f"v_mfma_f32_16x16x32_bf16 {v(aV+4*t,4)}, {x}, {wv_}, {z(aV+4*t)}")
                M.i(f"v_mfma_f32_16x16x32_bf16 {v(aQ+4*t,4)}, {wq}, {x}, {z(aQ+4*t)}")
            M.i(f"v_mfma_f32_16x16x32_bf16 {v(cK,4)}, {v(vONES,4)}, {wk}, {z(cK)}")
            M.i(f"v_mfma_f32_16x16x32_bf16 {v(cV,4)}, {v(vONES,4)}, {wv_}, {z(cV)}")
            M.i(f"v_mfma_f32_16x16x32_bf16 {v(cQ,4)}, {wq}, {v(vONES,4)}, {z(cQ)}")
            first, second = Seq(M[:MID]), Seq(M[MID:])
            F1, F2 = Seq(), Seq()
            if s < 15:
                rd_x(F1, s + 1)
            else:
                self.rd_resid(F1, vXR, V0, vL)
            S.extend(interleave(first, F1, start=1))
            if s < 15:
                S.wait(wt[s + 1], stw if s == 0 else None)
            else:
                S.wait(F1[-1])
            S.i("s_barrier")
            if s < 15:
                rd_w(S, s + 1)
            if s + LA < 16:
                wt[s + LA] = dma_w(F2, s + LA)
            else:
                lim = 16 if s == 15 else min(16, 3 * (s - 8))
                cnt = 16 if s == 15 else 3
                while cnt and len(wot) < lim:
                    wot += dma_wo(F2, len(wot))
                    cnt -= 1
            if s == 15:
                RR, RM, LR = SF, SF + 16, SF + 32
                G = Seq()
                for t in range(4):
                    G.i(f"ds_read_b128 {v(RR+4*t,4)}, {v(vSTR)} offset:{64*t}")
                    G.i(f"ds_read_b128 {v(RM+4*t,4)}, {v(vSTR)} offset:{256+64*t}")
                    G.i(f"ds_read2_b32 {v(LR+2*t,2)}, {v(vSTL)} offset0:{16*t} offset1:{64+16*t}")
                F2 = Seq(list(G) + list(F2))
            S.extend(interleave(second, F2))
        self.stamp()

        PK, PV, PQ = XF[0], XF[0] + 8, XF[1]
        U = WF[0]

        def phi(Q, r, dst):
            Q.i(f"v_pk_mul_f32 {v(U,2)}, {v(r,2)}, {sp(sLOG2E)}")
            Q.i(f"v_max_f32 {v(r)}, s{sEPS}, {v(r)}")
            Q.i(f"v_exp_f32_e64 {v(U)}, {v(U)} clamp")
            Q.i(f"v_exp_f32_e64 {v(U+1)}, {v(U+1)} clamp")
            Q.i(f"v_max_f32 {v(r+1)}, s{sEPS}, {v(r+1)}")
            Q.i(f"v_pk_add_f32 {v(r,2)}, {v(r,2)}, {v(U,2)}")
            Q.i(f"v_cvt_pk_bf16_f32 {v(dst)}, {v(r)}, {v(r+1)}")

        for p in range(8):
            r = aK + 2 * p
            S.i(f"v_pk_fma_f32 {v(r,2)}, {v(r,2)}, {v(RR+2*p,2)}, {sp(sEPS)}")
            S.i(f"v_pk_fma_f32 {v(r,2)}, {v(RM+2*p,2)}, {v(cK,2)}, {v(r,2)} neg_lo:[1,0,0] neg_hi:[1,0,0]")
            phi(S, r, PK + p)
        for p in range(8):
            r = aV + 2 * p
            S.i(f"v_pk_mul_f32 {v(r,2)}, {v(r,2)}, {v(RR+2*p,2)}")
            S.i(f"v_pk_fma_f32 {v(r,2)}, {v(RM+2*p,2)}, {v(cV,2)}, {v(r,2)} neg_lo:[1,0,0] neg_hi:[1,0,0]")
            S.i(f"v_cvt_pk_bf16_f32 {v(PV+p)}, {v(r)}, {v(r+1)}")
        KV, Z = S1, S2
        S.i(f"v_mfma_f32_16x16x32_bf16 {v(KV,4)}, {v(PK,4)}, {v(PV,4)}, 0")
        S.i(f"v_mfma_f32_16x16x32_bf16 {v(Z,4)}, {v(PK,4)}, {v(vONES,4)}, 0")
        S.i(f"v_mfma_f32_16x16x32_bf16 {v(KV,4)}, {v(PK+4,4)}, {v(PV+4,4)}, {v(KV,4)}")
        S.i(f"v_mfma_f32_16x16x32_bf16 {v(Z,4)}, {v(PK+4,4)}, {v(vONES,4)}, {v(Z,4)}")
        TB = WF[1]
        vKA, vZA = WF[1] + 4, WF[1] + 5
        for k in range(4):
            S.i(f"v_bfe_u32 {v(TB+k)}, {v(vTAG)}, {8*k}, 8")
        S.i(f"v_lshrrev_b32 {v(vKA)}, 3, {v(vL)}\nv_lshlrev_b32 {v(vKA)}, 12, {v(vKA)}\nv_lshl_add_u32 {v(vKA)}, {v(vFLP)}, 2, {v(vKA)}")
        S.i(f"v_and_b32 {v(vZA)}, 0x30, {v(vL)}")
        S.i(f"s_lshl_b32 s{sT2}, s{sJ}, 2\ns_add_u32 s{sT2}, s{sT2}, s{sWV}")
        S.i(f"s_lshl_b32 s{sT0}, s{sT2}, 15\ns_lshl_b32 s{sT1}, s{sRB}, 7\ns_add_u32 s{sT0}, s{sT0}, s{sT1}\ns_add_u32 s{sT0}, s{sT0}, {WS_KVP}")
        S.i(f"s_lshl_b32 s{sT3}, s{sT2}, 11\ns_lshr_b32 s{sT1}, s{sT1}, 1\ns_add_u32 s{sT1}, s{sT1}, s{sT3}\ns_add_u32 s{sT1}, s{sT1}, {WS_ZP}")
        for k in range(4):
            S.i(f"v_and_or_b32 {v(KV+k)}, {v(KV+k)}, s{sMASK}, {v(TB+k)}")
        S.i(f"buffer_store_dwordx4 {v(KV,4)}, {v(vKA)}, {srd(SWS)}, s{sT0} offen sc1")
        for k in range(4):
            S.i(f"v_and_or_b32 {v(Z+k)}, {v(Z+k)}, s{sMASK}, {v(TB+k)}")
        S.i("s_mov_b32 exec_lo, 0x00010001\ns_mov_b32 exec_hi, 0x00010001")
        S.i(f"buffer_store_dwordx4 {v(Z,4)}, {v(vZA)}, {srd(SWS)}, s{sT1} offen sc1")
        S.i("s_mov_b64 exec, -1")
        S.i(f"s_add_u32 s{sT3}, s{sT3}, s{sXB}\ns_add_u32 s{sT3}, s{sT3}, {WS_PQ}")
        pqst = []
        for tt in range(2):
            for i2 in range(2):
                t = 2 * tt + i2
                for h in range(2):
                    r = aQ + 4 * t + 2 * h
                    S.i(f"v_pk_fma_f32 {v(r,2)}, {v(r,2)}, {v(LR+2*t,2)}, {sp(sEPS)} op_sel_hi:[1,0,1]")
                    S.i(f"v_pk_fma_f32 {v(r,2)}, {v(LR+2*t,2)}, {v(cQ+2*h,2)}, {v(r,2)} op_sel:[1,0,0] neg_lo:[1,0,0] neg_hi:[1,0,0]")
                    phi(S, r, PQ + 4 * tt + 2 * i2 + h)
            q = PQ + 4 * tt
            S.i(f"v_permlane16_swap_b32 {v(q)}, {v(q+2)}\nv_permlane16_swap_b32 {v(q+1)}, {v(q+3)}")
            pqst.append(S.i(f"buffer_store_dwordx4 {v(q,4)}, {v(vL16)}, {srd(SWS)}, s{sT3} offen offset:{tt*1024} sc1"))
        self.stamp()

        vW1R = vA0
        S.i(f"v_lshrrev_b32 {v(g4)}, 4, {v(vL)}\nv_bfe_u32 {v(r4)}, {v(vL)}, 2, 2\nv_and_b32 {v(l3)}, 3, {v(vL)}")
        w1t = {}
        for s in range(5):
            w1t[s] = dma_w1(S, s)
        S.i(f"v_and_b32 {v(t0)}, 1, {v(g4)}\nv_lshl_add_u32 {v(t0)}, {v(t0)}, 2, {v(r4)}")
        S.i(f"v_lshrrev_b32 {v(t1)}, 1, {v(g4)}\nv_mul_u32_u24 {v(t1)}, 6144, {v(t1)}")
        S.i(f"v_lshl_add_u32 {v(t1)}, {v(t0)}, 7, {v(t1)}\nv_lshl_add_u32 {v(t1)}, {v(l3)}, 3, {v(t1)}")
        S.i(f"v_and_b32 {v(t2)}, 1, {v(t0)}\nv_lshlrev_b32 {v(t2)}, 1, {v(t2)}\nv_lshrrev_b32 {v(t0)}, 1, {v(t0)}")
        S.i(f"s_mul_i32 s{sT2}, s{sWV}, 3")
        for i in range(3):
            S.i(f"v_add_u32 {v(t3)}, s{sT2}, {v(t2)}")
            S.i(f"v_subrev_u32 {v(l15)}, 12, {v(t3)}\nv_min_u32 {v(t3)}, {v(t3)}, {v(l15)}")
            S.i(f"v_lshrrev_b32 {v(l15)}, 2, {v(t3)}\nv_and_b32 {v(t3)}, 3, {v(t3)}\nv_xor_b32 {v(t3)}, {v(t3)}, {v(t0)}")
            S.i(f"v_lshl_add_u32 {v(vW1R+i)}, {v(t3)}, 5, {v(t1)}\nv_lshl_add_u32 {v(vW1R+i)}, {v(l15)}, 10, {v(vW1R+i)}")
            S.i(f"s_add_u32 s{sT2}, s{sT2}, 1")

        def rd_w1(Q, s):
            toks = []
            for i in range(3):
                for rd in range(2):
                    toks.append(Q.i(f"ds_read_b64_tr_b16 {a((s*3+i)*4+2*rd,2)}, {v(vW1R+i)} offset:{LDS_A + (s % 5)*12288 + rd*3072}"))
            return toks

        def w1_round(steps, nxt):
            S.wait([w1t[s] for s in steps][-1])
            S.i("s_barrier")
            toks = []
            for s in steps:
                toks += rd_w1(S, s)
            S.wait(toks)
            S.i("s_barrier")
            for s in nxt:
                w1t[s] = dma_w1(S, s)

        S.wait(pqst)
        S.i("s_barrier")
        self.set_flag(0, vFLS, vTAG)

        lskip, lz, lgo, lp, lpo = (self.label(x) for x in ("rsk", "rz", "rgo", "rp", "rpo"))
        RA, RS, RD, RT = V0 + 8, V0 + 9, V0 + 12, V0 + 28
        S.i(f"s_cmp_gt_u32 s{sWV}, 1\ns_cbranch_scc1 {lskip}")
        S.opt_begin()
        S.i(f"s_lshr_b32 s{sT2}, s2, 3")
        S.i(f"s_cmp_eq_u32 s{sWV}, 1\ns_cbranch_scc1 {lz}")
        S.i(f"v_mov_b32 {v(RA)}, {v(vL16)}\nv_mov_b32 {v(RS)}, {v(vL16)}")
        S.i(f"s_lshl_b32 s{sT0}, s2, 12\ns_add_u32 s{sT0}, s{sT0}, {WS_KVP}\ns_mov_b32 s{sT1}, 1024")
        S.i(f"s_lshl_b32 s{sT3}, s2, 7\ns_add_u32 s{sT3}, s{sT3}, {WS_KVF}\ns_branch {lgo}")
        S.i(f"{lz}:\ns_cmp_lg_u32 s{sXCD}, 0\ns_cbranch_scc1 {lskip}")
        S.i(f"v_lshlrev_b32 {v(RS)}, 4, {v(l3)}\nv_lshrrev_b32 {v(RA)}, 3, {v(vL)}\nv_lshl_add_u32 {v(RA)}, {v(RA)}, 6, {v(RS)}")
        S.i(f"s_lshl_b32 s{sT0}, s{sT2}, 11\ns_add_u32 s{sT0}, s{sT0}, {WS_ZP}\ns_mov_b32 s{sT1}, 512")
        S.i(f"s_lshl_b32 s{sT3}, s{sT2}, 6\ns_add_u32 s{sT3}, s{sT3}, {WS_ZF}")
        S.i(f"{lgo}:\ns_mov_b32 s{sCNT}, 0\n{lp}:\ns_mov_b32 s{sT2}, s{sT0}")
        for k in range(4):
            S.i(f"buffer_load_dwordx4 {v(RD+4*k,4)}, {v(RA)}, {srd(SWS)}, s{sT2} offen sc1")
            if k < 3:
                S.i(f"s_add_u32 s{sT2}, s{sT2}, s{sT1}")
        S.i(f"s_add_u32 s{sCNT}, s{sCNT}, 1")
        for k in range(4):
            d = RD + 4 * k
            S.i(f"v_perm_b32 {v(RT+k)}, {v(d+1)}, {v(d)}, s{sSEL0}\nv_perm_b32 {v(RT+4)}, {v(d+3)}, {v(d+2)}, s{sSEL1}")
            S.i(f"v_bitop3_b32 {v(RT+k)}, {v(RT+k)}, {v(RT+4)}, {v(vTAG)} bitop3:0x56")
        S.i(f"v_or3_b32 {v(RT)}, {v(RT)}, {v(RT+1)}, {v(RT+2)}\nv_or_b32 {v(RT)}, {v(RT)}, {v(RT+3)}")
        S.i(f"v_cmp_ne_u32 vcc, 0, {v(RT)}")
        S.i(f"s_cmp_gt_u32 s{sCNT}, 0x40000\ns_cbranch_scc1 {lpo}\ns_cbranch_vccnz {lp}\n{lpo}:")
        for k in range(16):
            S.i(f"v_and_b32 {v(RD+k)}, s{sMASK}, {v(RD+k)}")
        for h in range(2):
            S.i(f"v_pk_add_f32 {v(RD+2*h,2)}, {v(RD+2*h,2)}, {v(RD+4+2*h,2)}\nv_pk_add_f32 {v(RD+8+2*h,2)}, {v(RD+8+2*h,2)}, {v(RD+12+2*h,2)}")
        for h in range(2):
            S.i(f"v_pk_add_f32 {v(RD+2*h,2)}, {v(RD+2*h,2)}, {v(RD+8+2*h,2)}")
        for k in range(4):
            S.i(f"v_add_f32_dpp {v(RD+4+k)}, {v(RD+k)}, {v(RD+k)} row_ror:8 row_mask:0xf bank_mask:0xf")
        for sw in ("v_permlane16_swap_b32", "v_permlane32_swap_b32"):
            for k in range(4):
                S.i(f"v_mov_b32 {v(RD+k)}, {v(RD+4+k)}")
            for k in range(4):
                S.i(f"{sw} {v(RD+k)}, {v(RD+4+k)}")
            for h in range(2):
                S.i(f"v_pk_add_f32 {v(RD+4+2*h,2)}, {v(RD+2*h,2)}, {v(RD+4+2*h,2)}")
        S.i(f"v_cvt_pk_bf16_f32 {v(RD+8)}, {v(RD+4)}, {v(RD+5)}\nv_cvt_pk_bf16_f32 {v(RD+9)}, {v(RD+6)}, {v(RD+7)}")
        S.i(f"v_perm_b32 {v(RD)}, {v(RD+8)}, {v(vTAG)}, s{sSEL2}\nv_perm_b32 {v(RD+1)}, {v(RD+8)}, {v(vTAG)}, s{sSEL3}")
        S.i(f"v_perm_b32 {v(RD+2)}, {v(RD+9)}, {v(vTAG)}, s{sSEL2}\nv_perm_b32 {v(RD+3)}, {v(RD+9)}, {v(vTAG)}, s{sSEL3}")
        S.i(f"s_mov_b64 exec, 0xff\nbuffer_store_dwordx4 {v(RD,4)}, {v(RS)}, {srd(SWS)}, s{sT3} offen sc1\ns_mov_b64 exec, -1\ns_nop 1")
        S.opt_end()
        S.i(f"{lskip}:")

        w1_round(range(0, 5), range(5, 10))
        self.stamp()

        PQF = V0 + 8
        self.poll_flags(0, vFLP, vT)
        S.i(f"s_lshl_b32 s{sT0}, s{sKH}, 15\ns_lshl_b32 s{sT1}, s{sTT}, 10\ns_add_u32 s{sT0}, s{sT0}, s{sT1}\ns_add_u32 s{sT0}, s{sT0}, s{sXB}\ns_add_u32 s{sT0}, s{sT0}, {WS_PQ}")
        for i in range(16):
            S.i(f"buffer_load_dwordx4 {v(PQF+4*i,4)}, {v(vL16)}, {srd(SWS)}, s{sT0} offen offset:{(i&1)*2048} sc1")
            if i & 1 and i < 15:
                S.i(f"s_add_u32 s{sT0}, s{sT0}, 4096")
        GD, GT = V0 + 72, V0 + 108
        vZG, vKW, vZW = vA0 + 3, vA0 + 4, vA0 + 5
        S.i(f"v_and_b32 {v(vZG)}, 0x1f0, {v(vL16)}")
        S.i(f"s_mul_i32 s{sT2}, s{sWV}, {8*544}\ns_add_u32 s{sT2}, s{sT2}, {KVL}")
        S.i(f"v_and_b32 {v(t0)}, 0xf0, {v(vL16)}\nv_add_u32 {v(t0)}, s{sT2}, {v(t0)}")
        S.i(f"v_lshrrev_b32 {v(t1)}, 1, {v(g4)}\nv_lshl_add_u32 {v(t0)}, {v(t1)}, 8, {v(t0)}\nv_and_b32 {v(t1)}, 1, {v(g4)}\nv_lshl_add_u32 {v(vKW)}, {v(t1)}, 3, {v(t0)}")
        S.i(f"v_bfe_u32 {v(t0)}, {v(vL)}, 2, 3\nv_mul_u32_u24 {v(t0)}, 544, {v(t0)}\nv_lshl_add_u32 {v(t0)}, {v(l3)}, 3, {v(t0)}\nv_add_u32 {v(vZW)}, s{sT2}, {v(t0)}")
        lp, lpo = self.label("gp"), self.label("gpo")
        S.i(f"s_lshl_b32 s{sT0}, s{sWV}, 13\ns_add_u32 s{sT0}, s{sT0}, {WS_KVF}\ns_add_u32 s{sT1}, s{sT0}, 4096")
        S.i(f"s_lshl_b32 s{sT3}, s{sWV}, 9\ns_add_u32 s{sT3}, s{sT3}, {WS_ZF}\ns_mov_b32 s{sCNT}, 0\n{lp}:")
        for k in range(8):
            S.i(f"buffer_load_dwordx4 {v(GD+4*k,4)}, {v(vL16)}, {srd(SWS)}, s{sT0 if k < 4 else sT1} offen offset:{(k&3)*1024} sc1")
        S.i(f"buffer_load_dwordx4 {v(GD+32,4)}, {v(vZG)}, {srd(SWS)}, s{sT3} offen sc1")
        S.i(f"s_add_u32 s{sCNT}, s{sCNT}, 1\nv_mov_b32 {v(GT)}, 0")
        for k in range(9):
            d = GD + 4 * k
            S.i(f"v_perm_b32 {v(GT+1)}, {v(d+1)}, {v(d)}, s{sSEL2}\nv_perm_b32 {v(GT+2)}, {v(d+3)}, {v(d+2)}, s{sSEL2}")
            S.i(f"v_bitop3_b32 {v(GT)}, {v(GT)}, {v(GT+1)}, {v(vTAG)} bitop3:0xf6")
            S.i(f"v_bitop3_b32 {v(GT)}, {v(GT)}, {v(GT+2)}, {v(vTAG)} bitop3:0xf6")
        S.i(f"v_cmp_ne_u32 vcc, 0, {v(GT)}")
        S.i(f"s_cmp_gt_u32 s{sCNT}, 0x40000\ns_cbranch_scc1 {lpo}\ns_cbranch_vccnz {lp}\n{lpo}:")
        kvw = []
        for k in range(9):
            d = GD + 4 * k
            S.i(f"v_perm_b32 {v(d)}, {v(d+1)}, {v(d)}, s{sSEL3}\nv_perm_b32 {v(d+1)}, {v(d+3)}, {v(d+2)}, s{sSEL3}")
            if k < 8:
                kvw.append(S.i(f"ds_write_b64 {v(vKW)}, {v(d,2)} offset:{k*544}"))
            else:
                kvw.append(S.i(f"ds_write_b64 {v(vZW)}, {v(d,2)} offset:512"))
        vKR, vWOo, vWOx, vEXW, vEXR = vA0 + 6, vA0 + 7, vA0 + 8, vA0 + 9, vA0 + 10
        hh = t2
        S.i(f"v_lshrrev_b32 {v(hh)}, 5, {v(vL)}")
        S.i(f"v_and_b32 {v(t0)}, 0xf0, {v(vL16)}\nv_lshl_add_u32 {v(t0)}, {v(hh)}, 8, {v(t0)}")
        S.i(f"v_lshlrev_b32 {v(t1)}, 4, {v(hh)}\nv_add_u32 {v(t1)}, 512, {v(t1)}")
        S.i(f"v_and_b32 {v(t3)}, 16, {v(vL)}\nv_cmp_eq_u32 vcc, 0, {v(t3)}")
        S.i(f"s_mul_i32 s{sT2}, s{sKH}, {16*544}\ns_add_u32 s{sT2}, s{sT2}, {KVL}")
        S.i(f"v_cndmask_b32 {v(t0)}, {v(t0)}, {v(t1)}, vcc\nv_add_u32 {v(vKR)}, s{sT2}, {v(t0)}")
        vCOL = vA0 + 11
        S.i(f"s_lshl_b32 s{sT2}, s{sKH}, 1\nv_and_b32 {v(t0)}, 2, {v(r4)}\nv_xor_b32 {v(t0)}, s{sT2}, {v(t0)}")
        S.i(f"v_and_b32 {v(t1)}, 1, {v(g4)}\nv_or_b32 {v(t0)}, {v(t0)}, {v(t1)}\nv_lshlrev_b32 {v(t0)}, 5, {v(t0)}")
        S.i(f"v_lshl_add_u32 {v(t0)}, {v(l3)}, 3, {v(t0)}\nv_lshl_add_u32 {v(vCOL)}, {v(r4)}, 7, {v(t0)}")
        S.i(f"s_lshl_b32 s{sT2}, s{sKH}, 15\ns_add_u32 s{sT2}, s{sT2}, {LDS_B}")
        S.i(f"v_lshl_add_u32 {v(vWOo)}, {v(hh)}, 9, {v(vCOL)}\nv_add_u32 {v(vWOo)}, s{sT2}, {v(vWOo)}\nv_xor_b32 {v(vWOx)}, 64, {v(vWOo)}")
        for dst, xr in ((vEXW, 0), (vEXR, 2)):
            S.i(f"s_xor_b32 s{sT2}, s{sWV}, {xr}\ns_lshl_b32 s{sT3}, s{sT2}, 12\ns_add_u32 s{sT3}, s{sT3}, {KVL + 17408 - 4096}")
            S.i(f"s_cmp_eq_u32 s{sT2}, 0\ns_cselect_b32 s{sT3}, 61440, s{sT3}\nv_add_u32 {v(dst)}, s{sT3}, {v(vL16)}")
        lne = self.label("ne")
        S.i(f"s_or_b32 s{sT2}, s2, s{sWV}\ns_cmp_lg_u32 s{sT2}, 0\ns_cbranch_scc1 {lne}")
        S.opt_begin()
        S.i(f"s_mov_b64 exec, 1\nbuffer_store_dword {v(vTAG)}, off, {srd(SWS)}, 0 sc1\ns_mov_b64 exec, -1")
        S.opt_end()
        S.i(f"{lne}:")
        S.wait(kvw, wot)
        w1_round(range(5, 10), range(10, 15))
        self.stamp()

        AO, AX = V0 + 72, V0 + 88
        NB = [V0 + 104, V0 + 120]
        OB = [V0 + 136, V0 + 140]
        KF = [V0 + 144, V0 + 148]
        WOF = [V0 + 152, V0 + 160]
        RC = V0 + 168
        for q in range(4):
            S.i(f"v_lshlrev_b32 {v(AO+4*q)}, 16, {v(vXR+2*q)}\nv_and_b32 {v(AO+4*q+1)}, 0xffff0000, {v(vXR+2*q)}")
            S.i(f"v_lshlrev_b32 {v(AO+4*q+2)}, 16, {v(vXR+2*q+1)}\nv_and_b32 {v(AO+4*q+3)}, 0xffff0000, {v(vXR+2*q+1)}")

        def rd_kv(Q, i):
            Q.i(f"ds_read_b128 {v(KF[i&1],4)}, {v(vKR)} offset:{i*544}")

        def rd_wo(Q, i):
            for o, base in ((0, vWOo), (4, vWOx)):
                for rd in range(2):
                    Q.i(f"ds_read_b64_tr_b16 {v(WOF[i&1]+o+2*rd,2)}, {v(base)} offset:{i*2048 + rd*1024}")

        def mf_n(Q, i):
            Q.i(f"v_mfma_f32_32x32x16_bf16 {v(NB[i&1],16)}, {v(KF[i&1],4)}, {v(PQF+4*i,4)}, 0")

        rd_kv(S, 0)
        rd_kv(S, 1)
        mf_n(S, 0)
        for i in range(17):
            N, O = NB[i & 1], OB[i & 1]
            if i + 1 < 16:
                mf_n(S, i + 1)
            if i + 2 < 16:
                rd_kv(S, i + 2)
            if i < 16:
                S.i(f"v_add_f32 {v(RC)}, s{sEPS}, {v(N)}\nv_rcp_f32 {v(RC)}, {v(RC)}")
            if i > 0:
                S.i(f"v_mfma_f32_32x32x16_bf16 {v(AO,16)}, {v(WOF[(i-1)&1],4)}, {v(OB[(i-1)&1],4)}, {v(AO,16)}")
            if i < 16:
                rd_wo(S, i)
                for h in range(2):
                    S.i(f"v_pk_mul_f32 {v(N+8+2*h,2)}, {v(N+8+2*h,2)}, {v(RC,2)} op_sel_hi:[1,0]")
            if i > 0:
                cx = "0" if i == 1 else v(AX, 16)
                S.i(f"v_mfma_f32_32x32x16_bf16 {v(AX,16)}, {v(WOF[(i-1)&1]+4,4)}, {v(OB[(i-1)&1],4)}, {cx}")
            if i < 16:
                for h in range(2, 4):
                    S.i(f"v_pk_mul_f32 {v(N+8+2*h,2)}, {v(N+8+2*h,2)}, {v(RC,2)} op_sel_hi:[1,0]")
                for h in range(4):
                    S.i(f"v_cvt_pk_bf16_f32 {v(O+h)}, {v(N+8+2*h)}, {v(N+9+2*h)}")
        self.exchange(S, AO, AX, NB[0], vEXW, vEXR)
        vHS = vA0 + 12
        S.i(f"v_and_b32 {v(t0)}, 0xf0, {v(vL16)}\nv_lshl_add_u32 {v(t0)}, {v(hh)}, 8, {v(t0)}\nv_and_b32 {v(t1)}, 1, {v(g4)}\nv_lshl_add_u32 {v(vHS)}, {v(t1)}, 10, {v(t0)}")
        S.i(f"s_lshl_b32 s{sT0}, s{sJ}, 1\ns_add_u32 s{sT0}, s{sT0}, s{sKH}\ns_lshl_b32 s{sT0}, s{sT0}, 11\ns_lshl_b32 s{sT1}, s{sTT}, 15")
        S.i(f"s_add_u32 s{sT0}, s{sT0}, s{sT1}\ns_add_u32 s{sT0}, s{sT0}, s{sXB}\ns_add_u32 s{sT0}, s{sT0}, {WS_H}")
        hst = []
        for c in range(2):
            for h in range(4):
                r = AO + 8 * c + 2 * h
                S.i(f"v_pk_add_f32 {v(r,2)}, {v(r,2)}, {v(NB[0]+8*c+2*h,2)}")
                S.i(f"v_cvt_pk_bf16_f32 {v(vHPK+4*c+h)}, {v(r)}, {v(r+1)}")
            hst.append(S.i(f"buffer_store_dwordx4 {v(vHPK+4*c,4)}, {v(vHS)}, {srd(SWS)}, s{sT0} offen offset:{c*512} sc1"))
        self.stamp()
        B1R, B2R = V0 + 8, vXR
        S.i(f"s_mul_i32 s{sT0}, s{sJ}, 384\ns_mul_i32 s{sT1}, s{sWV}, 96\ns_add_u32 s{sT0}, s{sT0}, s{sT1}\nv_lshlrev_b32 {v(t0)}, 3, {v(g4)}")
        for i in range(3):
            S.i(f"buffer_load_dwordx2 {v(B1R+2*i,2)}, {v(t0)}, {srd(SB1)}, s{sT0} offen offset:{32*i}")
        S.i(f"s_lshl_b32 s{sT0}, s{sJ}, 7\ns_lshl_b32 s{sT1}, s{sKH}, 6\ns_add_u32 s{sT0}, s{sT0}, s{sT1}\nv_lshlrev_b32 {v(t1)}, 3, {v(hh)}")
        for q in range(4):
            S.i(f"buffer_load_dwordx2 {v(B2R+2*q,2)}, {v(t1)}, {srd(SB2)}, s{sT0} offen offset:{16*q}")
        S.wait(hst)
        S.i("s_barrier")
        self.set_flag(1, vFLS, vTAG)
        toks = []
        for s in range(10, 15):
            toks += rd_w1(S, s)
        S.wait(toks)
        S.i("s_barrier")
        w1t[15] = dma_w1(S, 15)
        w2t = {}
        for n in range(16, 23):
            w2t[n] = dma_w2(S, n)
        CS, B1F = V0 + 16, V0 + 28
        for s in range(15):
            for i in range(3):
                S.i(f"v_mfma_f32_16x16x32_bf16 {v(CS+4*i,4)}, {a((s*3+i)*4,4)}, {v(vONES,4)}, {'0' if s == 0 else v(CS+4*i,4)}")
        for i in range(3):
            for h in range(2):
                S.i(f"v_lshlrev_b32 {v(B1F+4*i+2*h)}, 16, {v(B1R+2*i+h)}\nv_and_b32 {v(B1F+4*i+2*h+1)}, 0xffff0000, {v(B1R+2*i+h)}")
        self.poll_flags(1, vFLP, vT)
        ht = []
        S.i(f"s_lshl_b32 s{sT1}, s{sWV}, 12\ns_add_u32 s{sT0}, s{sT1}, s{sXB}\ns_add_u32 s{sT0}, s{sT0}, {WS_H}\ns_add_u32 m0, s{sT1}, {LDS_B}")
        for u in range(4):
            for k in range(4):
                ht.append(S.i(f"buffer_load_dwordx4 {v(vL16)}, {srd(SWS)}, s{sT0} offen offset:{k*1024} sc1 lds"))
            if u < 3:
                S.i(f"s_add_u32 s{sT0}, s{sT0}, 16384\ns_add_u32 m0, m0, 16384")
        S.i("s_barrier")
        toks = rd_w1(S, 15)
        for i in range(3):
            S.i(f"v_mfma_f32_16x16x32_bf16 {v(CS+4*i,4)}, {a((45+i)*4,4)}, {v(vONES,4)}, {v(CS+4*i,4)}")
        vHR, vHT = vA0, vA0 + 1
        S.i(f"v_add_u32 {v(vHR)}, {LDS_B}, {v(vL16)}")
        S.i(f"s_lshl_b32 s{sT0}, s{sKH}, 15\ns_lshl_b32 s{sT1}, s{sTT}, 10\ns_add_u32 s{sT0}, s{sT0}, s{sT1}\nv_add_u32 {v(vHT)}, s{sT0}, {v(vHR)}")
        vSW2, vSL2 = vA0 + 2, vA0 + 3
        S.i(f"v_and_b32 {v(l15)}, 15, {v(vL)}\nv_lshlrev_b32 {v(vSL2)}, 2, {v(l15)}\nv_add_u32 {v(vSL2)}, {STATS}, {v(vSL2)}")
        S.i(f"s_lshl_b32 s{sT0}, s{sWV}, 6\nv_add_u32 {v(vSW2)}, s{sT0}, {v(vSL2)}")
        S.wait(ht)
        S.i("s_barrier")
        self.stamp()

        AC = V0 + 40
        HF = [V0 + 88, V0 + 96, V0 + 104]
        TF = [V0 + 112, V0 + 116, V0 + 120]
        D1, D2 = V0 + 124, V0 + 126
        LR2 = V0 + 128
        GT0 = V0 + 136
        H1P = V0 + 144
        acc = lambda tt, i, i2: AC + ((tt * 3 + i) * 2 + i2) * 4

        def rd_h(Q, tt, ks):
            n = tt * 16 + ks
            for i2 in range(2):
                Q.i(f"ds_read_b128 {v(HF[n%3]+4*i2,4)}, {v(vHR)} offset:{tt*32768 + ks*2048 + i2*1024}")

        def gelu_seq(tt):
            Q = Seq()
            toks = []
            for i in range(3):
                P = H1P + 4 * (i & 1)
                for i2 in range(2):
                    t = 2 * tt + i2
                    for h in range(2):
                        r = acc(tt, i, i2) + 2 * h
                        T, E = GT0 + 4 * h, GT0 + 4 * h + 2
                        Q.i(f"v_pk_fma_f32 {v(T,2)}, {v(LR2+2*t,2)}, {v(CS+4*i+2*h,2)}, {v(B1F+4*i+2*h,2)} op_sel:[1,0,0] neg_lo:[1,0,0] neg_hi:[1,0,0]")
                        Q.i(f"v_pk_fma_f32 {v(T,2)}, {v(r,2)}, {v(LR2+2*t,2)}, {v(T,2)} op_sel_hi:[1,0,1]")
                        Q.i(f"v_pk_mul_f32 {v(E,2)}, {v(T,2)}, {v(T,2)}")
                        Q.i(f"v_pk_fma_f32 {v(E,2)}, {v(E,2)}, {sp(sG1)}, {v(vG0,2)}")
                        Q.i(f"v_pk_mul_f32 {v(E,2)}, {v(E,2)}, {v(T,2)}")
                        Q.i(f"v_exp_f32 {v(E)}, {v(E)}\nv_exp_f32 {v(E+1)}, {v(E+1)}")
                        Q.i(f"v_pk_add_f32 {v(E,2)}, {v(E,2)}, {sp(sONE)}")
                        Q.i(f"v_rcp_f32 {v(E)}, {v(E)}\nv_rcp_f32 {v(E+1)}, {v(E+1)}")
                        Q.i(f"v_pk_mul_f32 {v(T,2)}, {v(T,2)}, {v(E,2)}")
                        Q.i(f"v_cvt_pk_bf16_f32 {v(P+2*i2+h)}, {v(T)}, {v(T+1)}")
                Q.i(f"v_permlane16_swap_b32 {v(P)}, {v(P+2)}\nv_permlane16_swap_b32 {v(P+1)}, {v(P+3)}")
                toks.append(Q.i(f"buffer_store_dwordx4 {v(P,4)}, {v(vL16)}, {srd(SWS)}, s{sH1 + tt} offen offset:{i*1024} sc1"))
            return Q, toks

        vG0 = V0 + 152
        sH1 = sM1
        S.i(f"v_mov_b32 {v(vG0)}, s{sG0}\nv_mov_b32 {v(vG0+1)}, s{sG0}")
        S.i(f"s_mul_i32 s{sH1}, s{sRB}, 196608\ns_mul_i32 s{sT0}, s{sJ}, 12288\ns_add_u32 s{sH1}, s{sH1}, s{sT0}\ns_add_u32 s{sH1}, s{sH1}, s{sLW3}")
        S.i(f"s_add_u32 s{sH1}, s{sH1}, {WS_H1}\ns_add_u32 s{sH1+1}, s{sH1}, 98304")
        for k in range(2):
            S.i(f"v_mov_b32 {v(D1+k)}, 0\nv_mov_b32 {v(D2+k)}, 0")
        rd_h(S, 0, 0)
        S.i(f"ds_read_b128 {v(TF[0],4)}, {v(vHT)} offset:0")
        rd_h(S, 0, 1)
        S.i(f"ds_read_b128 {v(TF[1],4)}, {v(vHT)} offset:2048")
        h1st = []
        w2n = list(range(0, 16))
        for tt in range(2):
            G, toks = gelu_seq(0) if tt == 1 else (Seq(), [])
            h1st += toks
            gpos = 0
            for ks in range(16):
                n = tt * 16 + ks
                M, F = Seq(), Seq()
                for i in range(3):
                    for i2 in range(2):
                        r = acc(tt, i, i2)
                        M.i(f"v_mfma_f32_16x16x32_bf16 {v(r,4)}, {a((ks*3+i)*4,4)}, {v(HF[n%3]+4*i2,4)}, {'0' if ks == 0 else v(r,4)}")
                if n + 2 < 32:
                    rd_h(F, (n + 2) // 16, (n + 2) % 16)
                if tt == 0:
                    if ks + 2 < 16:
                        F.i(f"ds_read_b128 {v(TF[(ks+2)%3],4)}, {v(vHT)} offset:{(ks+2)*2048}")
                    for k in range(4):
                        F.i(f"v_dot2_f32_bf16 {v(D1+(k&1))}, {v(TF[ks%3]+k)}, {v(vONES)}, {v(D1+(k&1))}")
                        F.i(f"v_dot2_f32_bf16 {v(D2+(k&1))}, {v(TF[ks%3]+k)}, {v(TF[ks%3]+k)}, {v(D2+(k&1))}")
                else:
                    e = (len(G) * (ks + 1)) // 16
                    F.extend(G[gpos:e])
                    gpos = e
                if n & 1 and w2n:
                    k = w2n.pop(0)
                    w2t[k] = dma_w2(F, k)
                S.extend(interleave(M, F))
            if tt == 0:
                S.i(f"v_add_f32 {v(D1)}, {v(D1)}, {v(D1+1)}\nv_add_f32 {v(D2)}, {v(D2)}, {v(D2+1)}")
                for sw in ("v_permlane16_swap_b32", "v_permlane32_swap_b32"):
                    S.i(f"v_mov_b32 {v(D1+1)}, {v(D1)}\nv_mov_b32 {v(D2+1)}, {v(D2)}")
                    S.i(f"{sw} {v(D1)}, {v(D1+1)}\n{sw} {v(D2)}, {v(D2+1)}")
                    S.i(f"v_add_f32 {v(D1)}, {v(D1)}, {v(D1+1)}\nv_add_f32 {v(D2)}, {v(D2)}, {v(D2+1)}")
                self.ln_finalize(S, D1, D2, GT0, diag=False)
                stw = S.i(f"ds_write2_b32 {v(vSW2)}, {v(GT0)}, {v(GT0+1)} offset0:0 offset1:64")
                S.wait(stw)
                S.i("s_barrier")
                for t in range(4):
                    S.i(f"ds_read2_b32 {v(LR2+2*t,2)}, {v(vSL2)} offset0:{16*t} offset1:{64+16*t}")
        G, toks = gelu_seq(1)
        h1st += toks
        S.extend(G)
        self.stamp()
        S.wait(h1st)
        S.i("s_barrier")
        self.set_flag(2, vFLS, vTAG)

        for n in range(23, 39):
            w2t[n] = dma_w2(S, n)
        vAo, vAx, vBo, vBx, vCo, vCx = (vA0 + k for k in range(6))
        S.i(f"v_lshrrev_b32 {v(hh)}, 5, {v(vL)}\nv_lshl_add_u32 {v(t0)}, {v(hh)}, 10, {v(vCOL)}")
        S.i(f"s_lshl_b32 s{sT2}, s{sKH}, 15\nv_add_u32 {v(vAo)}, s{sT2}, {v(t0)}\nv_xor_b32 {v(vAx)}, 64, {v(vAo)}")
        S.i(f"v_add_u32 {v(vBo)}, {LDS_B}, {v(vAo)}\nv_add_u32 {v(vBx)}, {LDS_B}, {v(vAx)}")
        S.i(f"s_mul_i32 s{sT2}, s{sKH}, 14336\ns_add_u32 s{sT2}, s{sT2}, {LDS_C}\nv_add_u32 {v(vCo)}, s{sT2}, {v(t0)}\nv_xor_b32 {v(vCx)}, 64, {v(vCo)}")
        W2E = V0 + 8
        W2F = [V0 + 72, V0 + 80, V0 + 88]
        AO, AX, EX = V0 + 96, V0 + 112, V0 + 128

        def w2reg(n):
            return W2E + 8 * n if n < 8 else W2F[n % 3]

        def rd_w2(Q, n):
            base, _ = w2loc(n)
            ro, rx, off = (vAo, vAx, base) if base < LDS_B else (vBo, vBx, base - LDS_B) if base < LDS_C else (vCo, vCx, base - LDS_C)
            toks = []
            for o, rg in ((0, ro), (4, rx)):
                for rd in range(2):
                    toks.append(Q.i(f"ds_read_b64_tr_b16 {v(w2reg(n)+o+2*rd,2)}, {v(rg)} offset:{off + rd*512}"))
            return toks

        toks = []
        for n in range(8):
            toks += rd_w2(S, n)
        for q in range(4):
            for h in range(2):
                r = AO + 4 * q + 2 * h
                S.i(f"v_lshlrev_b32 {v(r)}, 16, {v(vHPK+2*q+h)}\nv_and_b32 {v(r+1)}, 0xffff0000, {v(vHPK+2*q+h)}")
                S.i(f"v_lshlrev_b32 {v(EX)}, 16, {v(B2R+2*q+h)}\nv_and_b32 {v(EX+1)}, 0xffff0000, {v(B2R+2*q+h)}")
                S.i(f"v_pk_add_f32 {v(r,2)}, {v(r,2)}, {v(EX,2)}")
        S.i(f"s_lshl_b32 s{sT2}, s{sKH}, 15\ns_lshl_b32 s{sT3}, s{sTT}, 12\ns_add_u32 s{sT2}, s{sT2}, s{sT3}\ns_add_u32 s{sT2}, s{sT2}, {LDS_A + 8192}")
        S.i(f"v_add_u32 {v(vEXW)}, s{sT2}, {v(vL16)}\nv_xor_b32 {v(vEXR)}, 0x8000, {v(vEXW)}")
        S.wait(toks)
        S.i("s_barrier")
        for n in range(39, 43):
            w2t[n] = dma_w2(S, n)
        self.poll_flags(2, vFLP, vT)
        S.i(f"s_mul_i32 s{sT0}, s{sRB}, 196608\ns_mul_i32 s{sT1}, s{sTT}, 98304\ns_add_u32 s{sT0}, s{sT0}, s{sT1}")
        S.i(f"s_mul_i32 s{sT1}, s{sKH}, {43*1024}\ns_add_u32 s{sT0}, s{sT0}, s{sT1}\ns_add_u32 s{sT0}, s{sT0}, {WS_H1}")
        LD = Seq()
        for n in range(43):
            LD.i(f"buffer_load_dwordx4 {a(4*n,4)}, {v(vL16)}, {srd(SWS)}, s{sT0} offen offset:{(n&3)*1024} sc1")
            if n & 3 == 3:
                LD.i(f"s_add_u32 s{sT0}, s{sT0}, 4096")
        PRE = 12
        npre = PRE + PRE // 4
        S.extend(LD[:npre])
        S.i("s_barrier")
        self.stamp()
        lpos = npre
        for n in range(43):
            S.i(f"v_mfma_f32_32x32x16_bf16 {v(AO,16)}, {v(w2reg(n),4)}, {a(4*n,4)}, {v(AO,16)}")
            if 8 <= n + 2 < 43:
                rd_w2(S, n + 2)
            S.i(f"v_mfma_f32_32x32x16_bf16 {v(AX,16)}, {v(w2reg(n)+4,4)}, {a(4*n,4)}, {'0' if n == 0 else v(AX,16)}")
            while lpos < len(LD):
                S.append(LD[lpos])
                lpos += 1
                if LD[lpos - 1].kind == 'vmem':
                    break
        self.exchange(S, AO, AX, EX, vEXW, vEXR)
        vOA = vA0
        S.i(f"v_and_b32 {v(t0)}, 31, {v(vL)}\nv_lshlrev_b32 {v(t0)}, 10, {v(t0)}\nv_lshl_add_u32 {v(vOA)}, {v(hh)}, 4, {v(t0)}")
        S.i(f"s_lshl_b32 s{sT0}, s{sTT}, 15\ns_add_u32 s{sT0}, s{sT0}, s{sXB}\ns_lshl_b32 s{sT1}, s{sJ}, 7\ns_add_u32 s{sT0}, s{sT0}, s{sT1}")
        S.i(f"s_lshl_b32 s{sT1}, s{sKH}, 6\ns_add_u32 s{sT0}, s{sT0}, s{sT1}")
        for m in range(2):
            P = W2E + 4 * m
            for h in range(4):
                r = AO + 8 * m + 2 * h
                S.i(f"v_pk_add_f32 {v(r,2)}, {v(r,2)}, {v(EX+8*m+2*h,2)}")
                S.i(f"v_cvt_pk_bf16_f32 {v(P+h)}, {v(r)}, {v(r+1)}")
            S.i(f"v_permlane32_swap_b32 {v(P)}, {v(P+2)}\nv_permlane32_swap_b32 {v(P+1)}, {v(P+3)}")
            S.i(f"buffer_store_dwordx4 {v(P,4)}, {v(vOA)}, {srd(SOUT)}, s{sT0} offen offset:{m*32}")
        if self.stamp_on:
            S.i("s_waitcnt vmcnt(0)")
            S.i(f"s_memtime s[4:5]\ns_memrealtime s[6:7]\ns_waitcnt lgkmcnt(0)")
            S.i(f"s_lshl_b32 s{sT0}, s2, 2\ns_add_u32 s{sT0}, s{sT0}, s{sWV}\ns_lshl_b32 s{sT0}, s{sT0}, 6\ns_add_u32 s{sT0}, s{sT0}, {0xC00000}")
            for k in range(10):
                S.i(f"v_mov_b32 {v(V0+k)}, s{sSTAMP+2*k}")
            S.i(f"v_mov_b32 {v(V0+10)}, s4\nv_mov_b32 {v(V0+11)}, s6\ns_mov_b64 exec, 1")
            for k in range(3):
                S.i(f"buffer_store_dwordx4 {v(V0+4*k,4)}, off, {srd(SWS)}, s{sT0} offset:{16*k}")
        S.i("L_end:\ns_endpgm\nL_code_end:")
        return S

    def ln_finalize(self, S, s1, s2, out, diag):
        if diag:
            S.i(f"v_cndmask_b32 {v(s2)}, {v(s2)}, {v(s2+1)}, {sp(sM1)}")
            S.i(f"v_cndmask_b32 {v(s2)}, {v(s2)}, {v(s2+2)}, {sp(sM2)}")
            S.i(f"v_cndmask_b32 {v(s2)}, {v(s2)}, {v(s2+3)}, {sp(sM3)}")
        inv = f2u(1.0 / 512)
        S.i(f"v_mul_f32 {v(out+1)}, {inv:#x}, {v(s1)}")
        S.i(f"v_mul_f32 {v(out)}, {inv:#x}, {v(s2)}")
        S.i(f"v_fma_f32 {v(out)}, -{v(out+1)}, {v(out+1)}, {v(out)}")
        S.i(f"v_max_f32 {v(out)}, 0, {v(out)}")
        S.i(f"v_add_f32 {v(out)}, {f2u(1e-5):#x}, {v(out)}")
        S.i(f"v_rsq_f32 {v(out)}, {v(out)}")
        S.i(f"v_mul_f32 {v(out+1)}, {v(out+1)}, {v(out)}")

    def rd_resid(self, Q, dst, tmp, vL):
        t0, t1, t2 = tmp, tmp + 1, tmp + 2
        Q.i(f"s_sub_u32 s{sT2}, s{sJ}, s{sXCD}\ns_and_b32 s{sT2}, s{sT2}, 7\ns_lshl_b32 s{sT2}, s{sT2}, 13\ns_lshl_b32 s{sT3}, s{sTT}, 12\ns_add_u32 s{sT2}, s{sT2}, s{sT3}")
        Q.i(f"v_and_b32 {v(t0)}, 31, {v(vL)}\nv_lshl_add_u32 {v(t0)}, {v(t0)}, 7, s{sT2}")
        Q.i(f"v_lshrrev_b32 {v(t1)}, 5, {v(vL)}\nv_lshl_add_u32 {v(t0)}, {v(t1)}, 3, {v(t0)}")
        Q.i(f"s_lshl_b32 s{sT3}, s{sKH}, 2\nv_bfe_u32 {v(t1)}, {v(vL)}, 1, 3\nv_xor_b32 {v(t1)}, s{sT3}, {v(t1)}")
        Q.i(f"v_lshl_add_u32 {v(t0)}, {v(t1)}, 4, {v(t0)}")
        for q in range(4):
            if q:
                Q.i(f"v_xor_b32 {v(t2)}, {16*q}, {v(t0)}")
            Q.i(f"ds_read_b64 {v(dst+2*q,2)}, {v(t2 if q else t0)}")

    def exchange(self, S, own, other, tmp, vw, vr):
        toks = [S.i(f"ds_write_b128 {v(vw)}, {v(other+4*q,4)} offset:{q*1024}") for q in range(4)]
        S.wait(toks)
        S.i("s_barrier")
        for q in range(4):
            S.i(f"ds_read_b128 {v(tmp+4*q,4)}, {v(vr)} offset:{q*1024}")


HEAD = open('cdna_kernels/' + NAME + '.s.ref').read().split('; Override launch')[0] if len(sys.argv) > 0 else ''


def make(**kw):
    g = Gen(**kw)
    body, nn = finalize(g.build())
    txt = HEAD + f"""; Persistent fused kernel: 256 workgroups (one per CU), generated by a script of my own.
; @launch grid=(256,1,1) block=(256,1,1) lds=163840
.amdgcn_target "amdgcn-amd-amdhsa--gfx950"
.text
.globl {KN}
.p2align 8
.type {KN},@function
{KN}:
{body}.section .rodata,"a"
.p2align 6
.amdhsa_kernel {KN}
  .amdhsa_next_free_vgpr 512
  .amdhsa_next_free_sgpr 102
  .amdhsa_accum_offset 256
  .amdhsa_group_segment_fixed_size 0
  .amdhsa_kernarg_size 88
  .amdhsa_user_sgpr_count 2
  .amdhsa_user_sgpr_kernarg_segment_ptr 1
  .amdhsa_system_sgpr_workgroup_id_x 1
  .amdhsa_float_denorm_mode_32 3
.end_amdhsa_kernel
"""
    return txt, nn


if __name__ == "__main__":
    import argparse
    ap = argparse.ArgumentParser()
    ap.add_argument('-o', default='cdna_kernels/' + NAME + '.s')
    ap.add_argument('--stamp', action='store_true')
    ap.add_argument('--opt', default='')
    args = ap.parse_args()
    kw = dict((k, int(x)) for k, x in (p.split('=') for p in args.opt.split(',') if p))
    txt, nn = make(stamp=args.stamp, **kw)
    open(args.o, 'w').write(txt)
    print('wrote', args.o, 'nop states', nn, 'lines', txt.count('\n'))
```

```python
import re

REG_RE = re.compile(r'\b([vas])\[(\d+):(\d+)\]|\b([vas])(\d+)\b|\b(vcc|exec|m0|scc|exec_lo|exec_hi|vcc_lo|vcc_hi)\b')
TRANS = ('v_exp_f32', 'v_log_f32', 'v_rcp_f32', 'v_rsq_f32', 'v_sqrt_f32', 'v_sin_f32', 'v_cos_f32')


def regs_of(opnd):
    out = []
    for m in REG_RE.finditer(opnd):
        if m.group(1):
            out += [(m.group(1), i) for i in range(int(m.group(2)), int(m.group(3)) + 1)]
        elif m.group(4):
            out.append((m.group(4), int(m.group(5))))
        else:
            n = m.group(6)
            out.append(('x', 'exec' if n.startswith('exec') else 'vcc' if n.startswith('vcc') else n))
    return out


def split_ops(rest):
    ops, depth, cur = [], 0, ''
    for ch in rest:
        if ch in '[(':
            depth += 1
        if ch in '])':
            depth -= 1
        if ch == ',' and depth == 0:
            ops.append(cur.strip())
            cur = ''
        else:
            cur += ch
    if cur.strip():
        ops.append(cur.strip())
    return ops


class I:
    __slots__ = ('text', 'op', 'kind', 'rd', 'wr', 'srcC', 'passes', 'wide', 'sdata', 'toks', 'lds_dma', 'dpp', 'note')

    def __init__(self, text, kind=None):
        self.text = text
        self.rd, self.wr, self.srcC, self.sdata = set(), set(), set(), set()
        self.passes, self.wide, self.lds_dma, self.dpp = 0, False, False, False
        self.toks = None
        self.note = None
        if kind is not None:
            self.kind, self.op = kind, kind
            return
        t = text.split(';')[0].strip()
        sp = t.split(None, 1)
        op = sp[0]
        for suf in ('_e32', '_e64', '_dpp', '_sdwa'):
            if op.endswith(suf):
                if suf == '_dpp':
                    self.dpp = True
                op = op[:-len(suf)]
        self.op = op
        ops = split_ops(sp[1]) if len(sp) > 1 else []
        R = [regs_of(o) for o in ops]
        allr = lambda rs: set(x for r in rs for x in r)
        if op.startswith('v_mfma'):
            self.kind = 'mfma'
            self.passes = 8 if '32x32' in op else 4
            self.wr = set(R[0])
            self.rd = allr(R[1:])
            self.srcC = set(R[3])
        elif op.startswith('buffer_') or op.startswith('global_'):
            self.kind = 'vmem'
            if re.search(r'\blds\b', t) and 'load' in op:
                self.lds_dma = True
                self.rd = allr(R) | {('x', 'm0')}
            elif 'load' in op:
                self.wr = set(R[0])
                self.rd = allr(R[1:])
            else:
                self.rd = allr(R)
                self.sdata = set(R[0] if op.startswith('buffer_') else R[1])
                self.wide = op.endswith('x4') or op.endswith('x3')
                if 'atomic' in op and re.search(r'\bsc0\b', t):
                    self.wr = set(R[0])
        elif op.startswith('ds_'):
            self.kind = 'ds'
            if 'read' in op or 'permute' in op or 'swizzle' in op:
                self.wr = set(R[0])
                self.rd = allr(R[1:])
            else:
                self.rd = allr(R)
        elif op.startswith('s_load') or op.startswith('s_buffer_load') or op in ('s_memtime', 's_memrealtime'):
            self.kind = 'smem'
            self.wr = set(R[0])
            self.rd = allr(R[1:])
        elif op == 's_waitcnt':
            self.kind = 'rawwait'
        elif op == 's_nop':
            self.kind = 'nop'
        elif op in ('s_barrier', 's_endpgm', 's_setprio', 's_sleep'):
            self.kind = 'misc'
        elif op.startswith('s_cbranch') or op == 's_branch' or op == 's_setpc_b64':
            self.kind = 'branch'
            self.rd = allr(R)
            if 'vcc' in op:
                self.rd.add(('x', 'vcc'))
        elif op.startswith('s_cmp') or op.startswith('s_bitcmp'):
            self.kind = 'salu'
            self.rd = allr(R)
        elif op.startswith('s_'):
            self.kind = 'salu'
            self.wr = set(R[0])
            self.rd = allr(R[1:])
            if 'saveexec' in op:
                self.wr.add(('x', 'exec'))
        elif op.startswith('v_'):
            self.kind = 'trans' if op in TRANS else 'valu'
            self.wr = set(R[0])
            self.rd = allr(R[1:])
            if op.startswith('v_permlane') and 'swap' in op:
                self.wr = allr(R)
                self.rd = allr(R)
            if op in ('v_fmac_f32', 'v_dot2c_f32_bf16', 'v_pk_fmac_f16') or self.dpp:
                self.rd |= set(R[0])
            if op in ('v_add_co_u32', 'v_addc_co_u32', 'v_sub_co_u32', 'v_subb_co_u32'):
                self.wr |= set(R[1])
                self.rd = allr(R[2:])
        else:
            raise ValueError('unknown instr ' + text)


class Seq(list):
    def i(self, text):
        last = None
        for line in text.split('\n'):
            line = line.strip()
            if not line or line.startswith(';'):
                continue
            if line.endswith(':') or line.startswith('.'):
                last = I(line, 'label')
            else:
                last = I(line)
            self.append(last)
        return last

    def wait(self, *toks):
        flat = []
        for t in toks:
            if isinstance(t, (list, tuple)):
                flat += list(t)
            elif t is not None:
                flat.append(t)
        w = I('', 'symwait')
        w.toks = flat
        self.append(w)

    def opt_begin(self):
        self.append(I('', 'optb'))

    def opt_end(self):
        self.append(I('', 'opte'))

    def comment(self, s):
        self.append(I('; ' + s, 'label'))


def interleave(main, fill, ratio=None, start=0):
    idx = [k for k, x in enumerate(main) if x.kind == 'mfma']
    idx = idx[start:]
    out = Seq()
    n = len(idx)
    pos = {}
    for q, k in enumerate(idx):
        pos[k] = (len(fill) * (q + 1)) // n if ratio is None else min(len(fill), int(ratio * (q + 1)))
    done = 0
    for k, x in enumerate(main):
        out.append(x)
        if k in pos:
            while done < pos[k]:
                out.append(fill[done])
                done += 1
    out.extend(fill[done:])
    return out


def weave(main, *streams):
    idx = [k for k, x in enumerate(main) if x.kind == 'mfma']
    n = len(idx)
    gaps = [[] for _ in range(n)]
    for st in streams:
        seq, lo, hi = st
        hi = n if hi is None else min(hi, n)
        lo = min(lo, hi - 1)
        m = len(seq)
        for q, it in enumerate(seq):
            g = lo + (q * (hi - lo)) // m
            gaps[g].extend(it if isinstance(it, list) else [it])
    out = Seq()
    g = 0
    for x in main:
        out.append(x)
        if x.kind == 'mfma':
            out.extend(gaps[g])
            g += 1
    return out


def groups(seq, endkind='vmem'):
    out, cur = [], []
    for x in seq:
        cur.append(x)
        if x.kind == endkind:
            out.append(cur)
            cur = []
    if cur:
        out.append(cur)
    return out


def resolve_waits(seq):
    out = []
    vmq, dsq = [], []
    smem_pending = set()
    stack = []

    def emit_wait(vm=None, lg=None):
        nonlocal vmq, dsq
        parts = []
        if vm is not None:
            n = min(vm, 62)
            parts.append('vmcnt(%d)' % n)
            vmq = vmq[len(vmq) - n:] if n else []
        if lg is not None:
            n = min(lg, 14)
            parts.append('lgkmcnt(%d)' % n)
            dsq = dsq[len(dsq) - n:] if n else []
            if n == 0:
                smem_pending.clear()
        if parts:
            out.append(I('s_waitcnt ' + ' '.join(parts)))

    def need(q, pred):
        k = None
        for n, x in enumerate(q):
            if pred(x):
                k = n
        return None if k is None else len(q) - 1 - k

    for x in seq:
        if x.kind == 'optb':
            stack.append((list(vmq), list(dsq)))
            continue
        if x.kind == 'opte':
            v0, d0 = stack.pop()
            for y in vmq + dsq:
                if y not in v0 and y not in d0:
                    assert not y.wr and not y.lds_dma, 'load still pending at end of optional section: ' + y.text
            vmq, dsq = v0, d0
            continue
        if x.kind == 'symwait':
            ids = set(id(t) for t in x.toks)
            emit_wait(need(vmq, lambda y: id(y) in ids), need(dsq, lambda y: id(y) in ids))
            continue
        if x.kind == 'rawwait':
            m = re.search(r'vmcnt\((\d+)\)', x.text)
            if m:
                n = int(m.group(1))
                vmq = vmq[max(0, len(vmq) - n):] if n else []
            m = re.search(r'lgkmcnt\((\d+)\)', x.text)
            if m:
                n = int(m.group(1))
                dsq = dsq[max(0, len(dsq) - n):] if n else []
                if n == 0:
                    smem_pending.clear()
            out.append(x)
            continue
        touched = x.rd | x.wr
        if touched:
            vm = need(vmq, lambda y: y.wr & touched)
            lg = need(dsq, lambda y: y.wr & touched)
            if smem_pending & touched:
                lg = 0
            if smem_pending and lg is not None:
                lg = 0
            emit_wait(vm, lg)
        out.append(x)
        if x.kind == 'vmem':
            vmq.append(x)
            assert len(vmq) <= 63 or True
        elif x.kind == 'ds':
            dsq.append(x)
        elif x.kind == 'smem':
            smem_pending |= x.wr
    return out


def hazard_states(p, c):
    need = 0
    isvalu = lambda z: z.kind in ('valu', 'trans')
    vec = lambda s: set(r for r in s if r[0] in 'va')
    sca = lambda s: set(r for r in s if r[0] == 's' or r == ('x', 'vcc'))
    if isvalu(p):
        raw = vec(p.wr) & c.rd
        if raw:
            if c.kind == 'mfma':
                need = max(need, 2)
            if c.op.startswith('v_permlane') or c.dpp:
                need = max(need, 2)
            if c.op in ('v_readfirstlane_b32', 'v_readlane_b32'):
                need = max(need, 1)
            if p.kind == 'trans' and c.kind != 'trans':
                need = max(need, 1)
        if p.op.startswith('v_dot') and vec(p.wr) & (c.rd | c.wr):
            if c.op != p.op:
                need = max(need, 3)
        sraw = sca(p.wr) & c.rd
        if sraw:
            if isvalu(c):
                need = max(need, 4 if c.op in ('v_readlane_b32', 'v_writelane_b32') else 2)
            if c.kind == 'vmem':
                need = max(need, 5)
            if c.kind in ('salu', 'branch', 'smem'):
                need = max(need, 1)
    if p.kind == 'mfma':
        big = p.passes == 8
        if c.kind == 'mfma':
            ab = c.rd - c.srcC
            if p.wr & ab:
                need = max(need, 12 if big else 8)
            if p.wr & c.srcC and not (p.wr == c.srcC and p.passes == c.passes):
                need = max(need, 10 if big else 6)
            if p.wr & c.wr and not (p.wr == c.srcC and p.passes == c.passes):
                need = max(need, 10 if big else 6)
        elif isvalu(c) or c.kind in ('vmem', 'ds'):
            if p.wr & (c.rd | c.wr):
                need = max(need, 12 if big else 8)
            if p.srcC & c.wr:
                need = max(need, 7 if big else 3)
    if p.kind == 'salu' and ('x', 'm0') in p.wr and c.lds_dma:
        need = max(need, 1)
    if p.kind == 'vmem' and p.wide and p.sdata & c.wr:
        need = max(need, 2)
    return need


def insert_nops(seq):
    out = []
    hist = []
    nn = 0
    for x in seq:
        if x.kind == 'label':
            out.append(x)
            continue
        need = 0
        dist = 0
        for p in reversed(hist):
            h = hazard_states(p[0], x)
            if h - dist > need:
                need = h - dist
            dist += p[1]
            if dist >= 12:
                break
        if need > 0:
            nn += need
            out.append(I('s_nop %d' % (need - 1)))
            hist.append((out[-1], need))
        out.append(x)
        st = 1
        if x.kind == 'nop':
            st = int(x.text.split()[1], 0) + 1
        hist.append((x, st))
        hist = hist[-14:]
    return out, nn


def finalize(seq):
    s = resolve_waits(seq)
    s, nn = insert_nops(s)
    lines = []
    for x in s:
        lines.append(x.text if x.kind == 'label' else '  ' + x.text)
    return '\n'.join(lines) + '\n', nn
```

```python
import sys, struct, math
from asmlib import Seq, I, weave, groups, finalize

NAME = "sequential_preLN__linear_attn_block__dense_activation_gelu__prompt"
KN = NAME + "_kernel"


def f2u(x):
    return struct.unpack('<I', struct.pack('<f', x))[0]


WS_KVF = 0x8000
WS_ZF = 0x10000
WS_ZP = 0x20000
WS_KVP = 0x100000
WS_G = 0x200000
G_SIZE = 0x60000
G_FLAG = 0
G_ST = 0x1000
G_PQ = 0x4000
G_H = 0x14000
G_H1 = 0x24000
WS_STAMP = 0xE00000
WS_SIZE = 0x1000000

LDS_A, LDS_B, LDS_C = 0, 65536, 131072
RING = LDS_B
KVL = LDS_C
XSLOT = KVL + 17408
STATS = 160768

SX, SWQ, SWO, SW1, SB1, SW2, SB2, SOUT, SWS = 4, 8, 12, 16, 20, 24, 28, 32, 36
sG, sFLS = 40, 41
sTAG, sXCD, sJ, sRB, sWV, sTT, sKH = 42, 43, 44, 45, 46, 47, 48
sT0, sT1, sT2, sT3 = 49, 50, 51, 52
sXB, sLW, sCNT, sK0, sD0 = 53, 54, 55, 56, 57
sM1, sM2, sM3 = 58, 60, 62
sEPS, sLOG2E = 64, 66
sLW2, sLW3, sW2G, sW2C = 68, 69, 70, 71
sR0, sR1, sR2 = 72, 73, 74
sSEL0, sSEL1, sSEL2, sSEL3, sMASK, sHI = 75, 76, 77, 78, 79, 80
sD1 = 81
sSTAMP = 82

MF16 = "v_mfma_f32_16x16x32_bf16"
MF32 = "v_mfma_f32_32x32x16_bf16"


def srd(s):
    return f"s[{s}:{s+3}]"


def v(n, w=1):
    return f"v{n}" if w == 1 else f"v[{n}:{n+w-1}]"


def a(n, w=1):
    return f"a{n}" if w == 1 else f"a[{n}:{n+w-1}]"


def sp(n):
    return f"s[{n}:{n+1}]"


def zipseq(x, y):
    out = Seq()
    n, m = len(x), len(y)
    i = k = 0
    while i < n or k < m:
        if k >= m or (i < n and i * m <= k * n):
            it = x[i]
            i += 1
        else:
            it = y[k]
            k += 1
        out.extend(it if isinstance(it, list) else [it])
    return out


def costed(seq):
    out = []
    for x in seq:
        out.append(x)
        if x.kind == 'trans':
            out.append([])
    return out


vL, vL16, g4, r4, l3, hh, l15 = 1, 2, 3, 4, 5, 6, 7
vONES = 8
vTAG, vFP, vT, vT2 = 12, 13, 14, 15
vXR = 16
vXG0, vXG1, vWG, vW1G, vWO0, vWO1 = 24, 25, 26, 27, 30, 31
vA0 = 32
V0 = 48


class Gen:
    def __init__(self, stamp=False, K1=8, TAIL=7, RPOS=1, R1A=3, R2A=2, R2C=2, W2PRE=0, PRE4=11, stamps=0, TQ=1, TW=1, TPOS=64):
        self.S = Seq()
        self.stamp_on = stamp
        self.nstamp = 0
        self.__dict__.update(K1=K1, TAIL=TAIL, RPOS=RPOS, R1A=R1A, R2A=R2A, R2C=R2C, W2PRE=W2PRE, PRE4=PRE4, stampset=stamps, TQ=TQ, TW=TW, TPOS=TPOS)
        self.lab = 0

    def stamp(self, sets=(0,), S=None):
        if self.stamp_on and self.stampset in sets:
            (S if S is not None else self.S).i(f"s_memtime {sp(sSTAMP + 2 * self.nstamp)}")
            self.nstamp += 1
            assert self.nstamp <= 10

    def label(self, p):
        self.lab += 1
        return f"L_{p}{self.lab}"

    def poll_loop(self, phase, soff):
        S = self.S
        l, o = self.label("poll"), self.label("pollo")
        S.i(f"s_mov_b32 s{sCNT}, 0\n{l}:")
        S.i(f"buffer_load_dword {v(vT)}, {v(vFP)}, {srd(SWS)}, s{soff} offen offset:{G_FLAG + phase*512} sc1")
        S.i(f"s_add_u32 s{sCNT}, s{sCNT}, 1\ns_waitcnt vmcnt(0)")
        S.i(f"v_cmp_ne_u32 vcc, s{sTAG}, {v(vT)}")
        S.i(f"s_cmp_gt_u32 s{sCNT}, 0x40000\ns_cbranch_scc1 {o}\ns_cbranch_vccnz {l}\n{o}:")

    def set_flag(self, phase, Q=None):
        Q = self.S if Q is None else Q
        Q.i(f"s_mov_b64 exec, 1\nbuffer_store_dword {v(vTAG)}, off, {srd(SWS)}, s{sFLS} offset:{G_FLAG + phase*512} sc1\ns_mov_b64 exec, -1")

    def dma_x(self, Q, n):
        if n == 0:
            Q.i(f"s_mov_b32 s{sD0}, s{sJ}")
        else:
            Q.i(f"s_cmp_le_u32 s{sJ}, {n-1}\ns_addc_u32 s{sD0}, {n-1}, 0")
        Q.i(f"s_add_u32 s{sD1}, s{sD0}, s{sXCD}\ns_and_b32 s{sD1}, s{sD1}, 7\ns_lshl_b32 s{sD1}, s{sD1}, 7\ns_add_u32 s{sD1}, s{sD1}, s{sXB}")
        Q.i(f"s_lshl_b32 s{sD0}, s{sD0}, 13\ns_add_u32 m0, s{sD0}, s{sLW2}")
        return [Q.i(f"buffer_load_dwordx4 {v(vXG0)}, {srd(SX)}, s{sD1} offen lds"),
                Q.i(f"buffer_load_dwordx4 {v(vXG1)}, {srd(SX)}, s{sD1} offen offset:1024 lds")]

    @staticmethod
    def slot(s):
        return (s + 5) % 7

    def dma_w(self, Q, s):
        Q.i(f"s_add_u32 s{sD1}, s{sK0}, {s}\ns_and_b32 s{sD1}, s{sD1}, 15\ns_mul_i32 s{sD1}, s{sD1}, {32*3072}")
        Q.i(f"s_add_u32 m0, s{sLW3}, {RING + self.slot(s) * 12288}")
        return [Q.i(f"buffer_load_dwordx4 {v(vWG)}, {srd(SWQ)}, s{sD1} offen offset:{p*1024} lds") for p in range(3)]

    def dma_wo(self, Q, n):
        Q.i(f"s_add_u32 s{sD1}, s{sW2G}, {n*65536}\ns_add_u32 m0, s{sLW2}, {LDS_B + n*8192}")
        return [Q.i(f"buffer_load_dwordx4 {v(vWO0)}, {srd(SWO)}, s{sD1} offen lds"),
                Q.i(f"buffer_load_dwordx4 {v(vWO1)}, {srd(SWO)}, s{sD1} offen offset:1024 lds")]

    @staticmethod
    def w1loc(s):
        return LDS_A + s * 12288 if s < 5 else XSLOT if s == 5 else LDS_B + (s - 6) * 12288 if s < 11 else LDS_A + (s - 11) * 12288

    def dma_w1(self, Q, s):
        Q.i(f"s_mov_b32 s{sD1}, {s*32*2752}\ns_add_u32 m0, s{sLW3}, {self.w1loc(s)}")
        return [Q.i(f"buffer_load_dwordx4 {v(vW1G+p)}, {srd(SW1)}, s{sD1} offen offset:{p*1024} lds") for p in range(3)]

    @staticmethod
    def w2loc(n):
        k = n % 11
        return LDS_A + k * 8192 if k < 8 else LDS_C + (k - 8) * 8192

    def dma_w2(self, Q, n):
        Q.i(f"s_add_u32 s{sD1}, s{sW2G}, {n*65536}\ns_add_u32 m0, s{sLW2}, {self.w2loc(n)}")
        return [Q.i(f"buffer_load_dwordx4 {v(vWO0)}, {srd(SW2)}, s{sD1} offen lds"),
                Q.i(f"buffer_load_dwordx4 {v(vWO1)}, {srd(SW2)}, s{sD1} offen offset:1024 lds")]

    def build(self):
        S = self.S
        self.prologue()
        self.p1()
        self.gap1()
        self.p2()
        self.gap2()
        self.p3()
        self.p4()
        if self.stamp_on:
            S.i("s_waitcnt vmcnt(0)")
            S.i(f"s_memtime s[4:5]\ns_memrealtime s[6:7]\ns_waitcnt lgkmcnt(0)")
            S.i(f"s_lshl_b32 s{sT0}, s2, 2\ns_add_u32 s{sT0}, s{sT0}, s{sWV}\ns_lshl_b32 s{sT0}, s{sT0}, 6\ns_add_u32 s{sT0}, s{sT0}, {WS_STAMP}")
            for k in range(10):
                S.i(f"v_mov_b32 {v(V0+k)}, s{sSTAMP+2*k if k < self.nstamp else 4}")
            S.i(f"v_mov_b32 {v(V0+10)}, s4\nv_mov_b32 {v(V0+11)}, s6\ns_mov_b64 exec, 1")
            for k in range(3):
                S.i(f"buffer_store_dwordx4 {v(V0+4*k,4)}, off, {srd(SWS)}, s{sT0} offset:{16*k}")
            S.i(f"buffer_store_dword v254, off, {srd(SWS)}, s{sT0} offset:48")
        S.i("L_end:\ns_endpgm\nL_code_end:")
        return S

    def prologue(self):
        S = self.S
        S.i(f"s_cmp_ge_u32 s2, 256\ns_cbranch_scc1 L_end")
        for s, off in ((SX, 0), (SWQ, 8), (SWS, 80), (SWO, 16), (SW1, 32), (SB1, 40), (SW2, 48), (SB2, 56), (SOUT, 64)):
            S.i(f"s_load_dwordx2 {sp(s)}, s[0:1], {off}")
        self.stamp(range(10))
        if self.stamp_on:
            S.i(f"s_memrealtime {sp(sM3)}")
        S.i(f"s_getpc_b64 {sp(sM1)}\nL_pc:")
        S.i(f"s_lshr_b32 s{sT0}, s2, 3\ns_lshl_b32 s{sT1}, s{sT0}, 11")
        S.i(f"v_lshl_add_u32 {v(vT)}, v0, 7, s{sT1}")
        S.i(f"v_min_u32 {v(vT)}, L_code_end-L_pc-4, {v(vT)}")
        S.i(f"v_cmp_gt_u32 vcc, 16, v0\ns_and_saveexec_b64 {sp(sM2)}, vcc\ns_cbranch_execz L_nopf")
        S.opt_begin()
        S.i(f"global_load_dword v255, {v(vT)}, {sp(sM1)}").wr = set()
        S.opt_end()
        S.i(f"L_nopf:\ns_mov_b64 exec, -1")
        S.i(f"v_lshrrev_b32 {v(vT)}, 6, v0\nv_and_b32 {v(vL)}, 63, v0")
        S.i(f"v_readfirstlane_b32 s{sWV}, {v(vT)}")
        S.i(f"s_and_b32 s{sXCD}, s2, 7\ns_and_b32 s{sJ}, s{sT0}, 7\ns_lshr_b32 s{sT0}, s{sT0}, 3")
        S.i(f"s_lshl_b32 s{sRB}, s{sXCD}, 2\ns_add_u32 s{sRB}, s{sRB}, s{sT0}")
        for s, sz in ((SX, 2097152), (SWQ, 1572864)):
            S.i(f"s_mov_b32 s{s+2}, {sz}\ns_mov_b32 s{s+3}, 0x20000")
        S.i(f"s_and_b32 s{sTT}, s{sWV}, 1\ns_lshl_b32 s{sLW2}, s{sWV}, 11\ns_mul_i32 s{sLW3}, s{sWV}, 3072")
        S.i(f"s_lshl_b32 s{sXB}, s{sRB}, 16\ns_lshl_b32 s{sK0}, s{sXCD}, 1\ns_lshl_b32 s{sW2G}, s{sWV}, 14")
        t0, t2, t3 = V0, V0 + 2, V0 + 3
        S.i(f"v_lshrrev_b32 {v(t0)}, 3, {v(vL)}\nv_lshrrev_b32 {v(g4)}, 4, {v(vL)}\nv_and_b32 {v(t2)}, 7, {v(vL)}")
        S.i(f"v_xor_b32 {v(t3)}, {v(g4)}, {v(t2)}\nv_lshl_add_u32 {v(vXG0)}, {v(t3)}, 4, s{sW2G}\nv_lshl_add_u32 {v(vXG0)}, {v(t0)}, 10, {v(vXG0)}")
        S.i(f"v_xor_b32 {v(vXG1)}, 64, {v(vXG0)}\nv_add_u32 {v(vXG1)}, {8192-1024}, {v(vXG1)}")
        S.i(f"s_lshl_b32 s{sT0}, s{sTT}, 2")
        S.i(f"v_and_b32 {v(t3)}, 1, {v(g4)}\nv_lshl_or_b32 {v(t3)}, {v(t3)}, 1, s{sT0}\nv_xor_b32 {v(t3)}, {v(t3)}, {v(t2)}")
        S.i(f"s_lshl_b32 s{sT2}, s{sJ}, 7\ns_lshl_b32 s{sT1}, s{sLW3}, 3\ns_add_u32 s{sT1}, s{sT1}, s{sT2}")
        S.i(f"v_lshl_add_u32 {v(vWG)}, {v(t3)}, 4, s{sT1}\nv_mul_u32_u24 {v(t3)}, 3072, {v(t0)}\nv_add_u32 {v(vWG)}, {v(vWG)}, {v(t3)}")
        if self.TQ:
            S.i(f"s_lshr_b32 s{sT0}, s2, 3\ns_lshl_b32 s{sT0}, s{sT0}, 2\ns_add_u32 s{sT0}, s{sT0}, s{sWV}\ns_mul_i32 s{sT3}, s{sT0}, {4*3072}")
            S.i(f"v_lshlrev_b32 {v(vT)}, 10, {v(vL)}")
        S.i("s_waitcnt lgkmcnt(0)")
        if self.stamp_on:
            S.i(f"v_mov_b32 v254, s{sM3}")

    def setup_rest(self):
        Q = Seq()
        t0, t1, t2, t3 = V0, V0 + 1, V0 + 2, V0 + 3
        for s, sz in ((SWS, WS_SIZE), (SWO, 524288), (SW1, 1409024 + 2048), (SB1, 2752), (SW2, 1409024), (SB2, 1024), (SOUT, 2097152)):
            Q.i(f"s_mov_b32 s{s+2}, {sz}\ns_mov_b32 s{s+3}, 0x20000")
        Q.i(f"s_lshr_b32 s{sKH}, s{sWV}, 1\ns_lshl_b32 s{sLW}, s{sWV}, 10")
        Q.i(f"s_mul_i32 s{sG}, s{sRB}, {G_SIZE}\ns_add_u32 s{sG}, s{sG}, {WS_G}")
        Q.i(f"s_lshl_b32 s{sT2}, s{sJ}, 2\ns_lshl_b32 s{sT3}, s{sWV}, 7\ns_add_u32 s{sFLS}, s{sT2}, s{sT3}\ns_add_u32 s{sFLS}, s{sFLS}, s{sG}")
        Q.i(f"v_lshlrev_b32 {v(vL16)}, 4, {v(vL)}\nv_and_b32 {v(l15)}, 15, {v(vL)}\nv_bfe_u32 {v(r4)}, {v(vL)}, 2, 2")
        Q.i(f"v_and_b32 {v(l3)}, 3, {v(vL)}\nv_lshrrev_b32 {v(hh)}, 5, {v(vL)}")
        vXA0, vXA1, vWA0, vWA1, vXS0, vXS1, vSTW, vSTR, vSTL = (vA0 + k for k in range(9))
        Q.i(f"v_lshrrev_b32 {v(t3)}, 1, {v(l15)}\nv_xor_b32 {v(t3)}, {v(t3)}, {v(g4)}\nv_lshlrev_b32 {v(t3)}, 4, {v(t3)}")
        Q.i(f"v_lshl_add_u32 {v(vXA0)}, {v(l15)}, 7, {v(t3)}\nv_xor_b32 {v(vXA1)}, 64, {v(vXA0)}")
        Q.i(f"v_add_u32 {v(vXS0)}, s{sLW2}, {v(vXA0)}\nv_add_u32 {v(vXS1)}, s{sLW2}, {v(vXA1)}")
        Q.i(f"v_and_b32 {v(t3)}, 1, {v(g4)}\nv_lshrrev_b32 {v(t1)}, 1, {v(r4)}\nv_lshl_or_b32 {v(t3)}, {v(t3)}, 1, {v(t1)}")
        Q.i(f"v_xor_b32 {v(t3)}, s{sWV}, {v(t3)}\nv_lshlrev_b32 {v(t3)}, 5, {v(t3)}\nv_lshl_add_u32 {v(t3)}, {v(l3)}, 3, {v(t3)}")
        Q.i(f"v_lshl_add_u32 {v(t3)}, {v(r4)}, 7, {v(t3)}\nv_mul_u32_u24 {v(t1)}, 3072, {v(g4)}\nv_add_u32 {v(t3)}, {v(t3)}, {v(t1)}")
        Q.i(f"v_add_u32 {v(vWA0)}, {RING}, {v(t3)}\nv_add_u32 {v(vWA1)}, {RING + 49152}, {v(t3)}")
        for k in range(4):
            Q.i(f"v_mov_b32 {v(vONES+k)}, 0x3f803f80")
        R = Seq()
        R.i(f"v_lshlrev_b32 {v(vSTL)}, 2, {v(l15)}\nv_add_u32 {v(vSTL)}, {STATS}, {v(vSTL)}")
        R.i(f"s_lshl_b32 s{sT2}, s{sWV}, 6\nv_add_u32 {v(vSTW)}, s{sT2}, {v(vSTL)}")
        R.i(f"v_lshlrev_b32 {v(vSTR)}, 4, {v(g4)}\nv_add_u32 {v(vSTR)}, {STATS}, {v(vSTR)}")
        R.i(f"v_and_b32 {v(t3)}, 2, {v(t0)}\nv_lshlrev_b32 {v(t3)}, 1, {v(t3)}\nv_xor_b32 {v(t3)}, {v(t3)}, {v(t2)}")
        R.i(f"s_lshl_b32 s{sT2}, s{sJ}, 7\nv_lshl_add_u32 {v(vWO0)}, {v(t3)}, 4, s{sT2}\nv_lshl_add_u32 {v(vWO0)}, {v(t0)}, 10, {v(vWO0)}")
        R.i(f"v_add_u32 {v(vWO1)}, {8192-1024}, {v(vWO0)}")
        R.i(f"v_and_b32 {v(t3)}, 6, {v(t0)}\nv_xor_b32 {v(t3)}, {v(t3)}, {v(t2)}")
        R.i(f"v_and_b32 {v(t1)}, 1, {v(t0)}\nv_lshlrev_b32 {v(t1)}, 2, {v(t1)}\nv_sub_u32 {v(t3)}, {v(t3)}, {v(t1)}")
        R.i(f"s_mul_i32 s{sT2}, s{sJ}, 384\ns_mul_i32 s{sT3}, s{sWV}, {8*2752}\ns_add_u32 s{sT2}, s{sT2}, s{sT3}\ns_add_u32 s{sT2}, s{sT2}, 2048")
        R.i(f"v_mul_u32_u24 {v(t1)}, 2752, {v(t0)}\nv_add_u32 {v(t1)}, s{sT2}, {v(t1)}\nv_lshl_add_u32 {v(t1)}, {v(t3)}, 4, {v(t1)}")
        R.i(f"v_ashrrev_i32 {v(t3)}, 31, {v(t3)}\nv_and_b32 {v(t3)}, 384, {v(t3)}\nv_add_u32 {v(vW1G)}, {v(t1)}, {v(t3)}")
        R.i(f"v_subrev_u32 {v(vW1G+1)}, {1024-128}, {v(t1)}\nv_subrev_u32 {v(vW1G+2)}, {2048-256}, {v(t1)}")
        R.i(f"v_and_b32 {v(t3)}, 3, {v(t0)}\nv_lshlrev_b32 {v(t3)}, 7, {v(t3)}\nv_lshl_add_u32 {v(vFP)}, {v(t2)}, 2, {v(t3)}")
        if self.TW:
            u, c = sT2, sT3
            R.i(f"s_lshl_b32 s{u}, s2, 2\ns_add_u32 s{u}, s{u}, s{sWV}\ns_lshr_b32 s{c}, s2, 3\ns_lshl_b32 s{c}, s{c}, 2\ns_add_u32 s{c}, s{c}, s{sWV}")
            for k, n, bias in ((0, 4, 0), (1, 11, 2048), (2, 11, 0)):
                d = vA0 + 9 + k
                R.i(f"s_mul_i32 s{sT0}, s{u}, {n*128}\ns_add_u32 s{sT0}, s{sT0}, {bias}\nv_lshl_add_u32 {v(d)}, {v(l15)}, 7, s{sT0}")
                if k != 1:
                    R.i(f"s_mul_i32 s{sT0}, s{c}, {n*1024}\ns_add_u32 s{sT0}, s{sT0}, 384\nv_lshl_add_u32 {v(t3)}, {v(l15)}, 10, s{sT0}")
                    R.i(f"v_and_b32 {v(t1)}, 1, {v(g4)}\nv_sub_u32 {v(t1)}, 0, {v(t1)}\nv_bfi_b32 {v(d)}, {v(t1)}, {v(t3)}, {v(d)}")
                R.i(f"v_sub_u32 {v(t1)}, {n-1}, {v(l15)}\nv_sub_u32 {v(t3)}, {31 if k != 1 else 15}, {v(vL)}\nv_or_b32 {v(t1)}, {v(t1)}, {v(t3)}")
                R.i(f"v_and_b32 {v(t1)}, 0x40000000, {v(t1)}\nv_or_b32 {v(d)}, {v(d)}, {v(t1)}")
        for s, val in ((sEPS, 1e-6), (sLOG2E, math.log2(math.e))):
            R.i(f"s_mov_b32 s{s}, {f2u(val):#x}\ns_mov_b32 s{s+1}, {f2u(val):#x}")
        for s, val in ((sM1, 0x22222222), (sM2, 0x44444444), (sM3, 0x88888888)):
            R.i(f"s_mov_b32 s{s}, {val:#x}\ns_mov_b32 s{s+1}, {val:#x}")
        R.i(f"s_mov_b32 s{sSEL0}, 0x0c0c0400\ns_mov_b32 s{sSEL1}, 0x04000c0c\ns_mov_b32 s{sSEL2}, 0x05040100\ns_mov_b32 s{sSEL3}, 0x07060302")
        R.i(f"s_mov_b32 s{sMASK}, 0xffffff00\ns_mov_b32 s{sHI}, 0xffff0000")
        return Q, R

    def p1(self):
        S = self.S
        K1, TAIL = self.K1, self.TAIL
        vXA0, vXA1, vWA0, vWA1, vXS0, vXS1, vSTW, vSTR, vSTL = (vA0 + k for k in range(9))
        aK, aV, aQ = V0 + 8, V0 + 24, V0 + 40
        cK, cV, cQ = V0 + 56, V0 + 60, V0 + 64
        XF = [V0 + 68, V0 + 84]
        WF = [V0 + 100, V0 + 112]
        SF = [V0 + 124, V0 + 132]
        S1, S2 = V0 + 140, V0 + 144
        RR, RM, LR = V0 + 148, V0 + 164, V0 + 180
        D = Seq()
        gend, glast = [], []
        for s in range(16):
            if s == 0:
                self.dma_x(D, 0)
            if s <= 6:
                self.dma_x(D, s + 1)
            t = self.dma_w(D, s)
            glast.append(t[-1])
            gend.append(sum(1 for x in D if x.kind == 'vmem'))
        self.wot = []
        for n in range(8):
            self.wot += self.dma_wo(D, n)
        DG = groups(D)
        if self.TW:
            T = Seq()
            for sr, k in ((SWO, 0), (SW1, 1), (SW2, 2)):
                T.i(f"buffer_load_dword v255, {v(vA0+9+k)}, {srd(sr)}, 0 offen").wr = set()
            DG[self.TPOS] = list(T) + DG[self.TPOS]
        issued = 0

        def take(upto):
            nonlocal issued
            upto = min(upto, len(DG))
            r = DG[issued:upto]
            issued = max(issued, upto)
            return r

        def rd_x(Q, s):
            for t in range(4):
                Q.i(f"ds_read_b128 {v(XF[s&1]+4*t,4)}, {v(vXA1 if s & 1 else vXA0)} offset:{(s >> 1) * 8192 + t * 2048}")

        def rd_w(Q, s):
            sl = self.slot(s)
            base, off = (vWA0, sl * 12288) if sl < 4 else (vWA1, (sl - 4) * 12288)
            for p in (1, 2, 0):
                for rd in range(2):
                    Q.i(f"ds_read_b64_tr_b16 {v(WF[s&1]+4*p+2*rd,2)}, {v(base)} offset:{off + p*1024 + rd*512}")
            if s < 8:
                Q.i(f"ds_read_b128 {v(SF[s&1],4)}, {v(vXS0)} offset:{s * 8192}")
                Q.i(f"ds_read_b128 {v(SF[s&1]+4,4)}, {v(vXS1)} offset:{s * 8192}")

        def mfmas(s):
            b = s & 1
            M = Seq()
            z = (lambda r: "0") if s == 0 else (lambda r: v(r, 4))
            wq, wk, wv_ = v(WF[b], 4), v(WF[b] + 4, 4), v(WF[b] + 8, 4)
            M.i(f"{MF16} {v(cK,4)}, {v(vONES,4)}, {wk}, {z(cK)}")
            M.i(f"{MF16} {v(cV,4)}, {v(vONES,4)}, {wv_}, {z(cV)}")
            M.i(f"{MF16} {v(cQ,4)}, {wq}, {v(vONES,4)}, {z(cQ)}")
            if s < 8:
                for h in range(2):
                    f = v(SF[b] + 4 * h, 4)
                    first = s == 0 and h == 0
                    M.i(f"{MF16} {v(S1,4)}, {v(vONES,4)}, {f}, {'0' if first else v(S1,4)}")
                    M.i(f"{MF16} {v(S2,4)}, {f}, {f}, {'0' if first else v(S2,4)}")
            for t in range(4):
                x = v(XF[b] + 4 * t, 4)
                M.i(f"{MF16} {v(aK+4*t,4)}, {x}, {wk}, {z(aK+4*t)}")
                M.i(f"{MF16} {v(aV+4*t,4)}, {x}, {wv_}, {z(aV+4*t)}")
                M.i(f"{MF16} {v(aQ+4*t,4)}, {wq}, {x}, {z(aQ+4*t)}")
            return M

        for g in take(gend[0]):
            S.extend(g)
        if self.TQ:
            S.i(f"s_mov_b64 exec, 0xfff")
            S.i(f"buffer_load_dword v255, {v(vT)}, {srd(SWQ)}, s{sT3} offen offset:384").wr = set()
            S.i(f"s_mov_b64 exec, -1")
        S.i(f"s_load_dword s{sTAG}, {sp(SWS)}, 0")
        S.i(f"s_sub_u32 s{SW1}, s{SW1}, 2048\ns_subb_u32 s{SW1+1}, s{SW1+1}, 0")
        Q, R = self.setup_rest()
        S.extend(zipseq(list(Q), take(gend[0] + min(K1, 5))))
        S.extend(zipseq(list(R), take(gend[0] + K1)))
        S.i(f"v_lshlrev_b32 {v(vT)}, 7, {v(l15)}")
        S.i(f"buffer_load_dword v255, {v(vT)}, {srd(SWS)}, s{sG} offen sc1").wr = set()
        S.i(f"buffer_load_dword v255, off, {srd(SOUT)}, s{sXB}").wr = set()
        S.i(f"s_waitcnt lgkmcnt(0)\ns_mul_i32 s{sTAG}, s{sTAG}, 0x19660d\ns_add_u32 s{sTAG}, s{sTAG}, 0x3c6ef35f")
        S.i(f"v_mov_b32 {v(vTAG)}, s{sTAG}")
        S.wait(glast[0])
        S.i("s_barrier")
        self.stamp((0, 1))
        prev = Seq()
        stw = None
        for s in range(16):
            M = mfmas(s)
            head, tail = Seq(M[:len(M) - TAIL]), Seq(M[len(M) - TAIL:])
            RW, RX, EX = Seq(), Seq(), Seq()
            rd_w(RW, s)
            if s == 0:
                rd_x(RW, 0)
            if s < 15:
                rd_x(RX, s + 1)
            else:
                self.rd_resid(RX)
            if s == 9:
                self.ln1_finalize(EX, S1, S2, V0)
                g = Seq()
                g.i(f"s_mov_b32 exec_lo, 0x00f0000f\ns_mov_b32 exec_hi, 0xf0000f00")
                stw = g.i(f"ds_write2_b32 {v(vSTW)}, {v(V0)}, {v(V0+1)} offset0:0 offset1:64")
                g.i("s_mov_b64 exec, -1")
                EX = list(EX) + [list(g)]
            if s in (12, 13):
                for t in range(2 * (s - 12), 2 * (s - 12) + 2):
                    EX.i(f"ds_read_b128 {v(RR+4*t,4)}, {v(vSTR)} offset:{64*t}")
                    EX.i(f"ds_read_b128 {v(RM+4*t,4)}, {v(vSTR)} offset:{256+64*t}")
                    EX.i(f"ds_read2_b32 {v(LR+2*t,2)}, {v(vSTL)} offset0:{16*t} offset1:{64+16*t}")
            want = (gend[s + 1] if s < 15 else 64 + 3) + K1
            lim = gend[min(15, s + 6)] if s + 6 < 15 else 64 + 2 * max(0, (3 * (s - 9)) // 2)
            dm = take(min(want, lim))
            np_ = len(prev)
            seg = Seq(list(prev) + list(head))
            if np_ == 0:
                S.extend(RW)
                S.extend(weave(seg, (dm, 0, None), (list(RX), 6, None)))
            else:
                S.extend(RW[:2])
                streams = [(list(RW[2:]), 0, max(1, np_ - 3)), (list(RX), np_, None)]
                if dm:
                    streams.append((dm, 0, None))
                if len(EX):
                    streams.append((list(EX), 1, None))
                S.extend(weave(seg, *streams))
            if s < 15:
                S.wait(glast[s + 1], stw if s == 9 else None)
            else:
                S.wait(RX[-1])
            S.i("s_barrier")
            if s in (3, 7, 11):
                self.stamp((1,))
            prev = tail
        rest = take(len(DG))
        S.extend(weave(prev, (rest[:2], 0, None)))
        rest = rest[2:]
        self.stamp((0, 1))

        PK, PV, PQ = XF[0], XF[0] + 8, XF[1]
        U = WF[0]

        def phi(Q, r, dst):
            Q.i(f"v_pk_mul_f32 {v(U,2)}, {v(r,2)}, {sp(sLOG2E)}")
            Q.i(f"v_max_f32 {v(r)}, s{sEPS}, {v(r)}")
            Q.i(f"v_exp_f32_e64 {v(U)}, {v(U)} clamp")
            Q.i(f"v_exp_f32_e64 {v(U+1)}, {v(U+1)} clamp")
            Q.i(f"v_max_f32 {v(r+1)}, s{sEPS}, {v(r+1)}")
            Q.i(f"v_pk_add_f32 {v(r,2)}, {v(r,2)}, {v(U,2)}")
            Q.i(f"v_cvt_pk_bf16_f32 {v(dst)}, {v(r)}, {v(r+1)}")

        E = Seq()
        for p in range(8):
            r = aK + 2 * p
            E.i(f"v_pk_fma_f32 {v(r,2)}, {v(r,2)}, {v(RR+2*p,2)}, {sp(sEPS)}")
            E.i(f"v_pk_fma_f32 {v(r,2)}, {v(RM+2*p,2)}, {v(cK,2)}, {v(r,2)} neg_lo:[1,0,0] neg_hi:[1,0,0]")
            phi(E, r, PK + p)
        S.extend(zipseq(list(E), rest) if rest else E)
        for p in range(8):
            r = aV + 2 * p
            S.i(f"v_pk_mul_f32 {v(r,2)}, {v(r,2)}, {v(RR+2*p,2)}")
            S.i(f"v_pk_fma_f32 {v(r,2)}, {v(RM+2*p,2)}, {v(cV,2)}, {v(r,2)} neg_lo:[1,0,0] neg_hi:[1,0,0]")
            S.i(f"v_cvt_pk_bf16_f32 {v(PV+p)}, {v(r)}, {v(r+1)}")
        KV, Z = S1, S2
        TB = WF[1]
        vKA, vZA = WF[1] + 4, WF[1] + 5
        S.i(f"{MF16} {v(KV,4)}, {v(PK,4)}, {v(PV,4)}, 0")
        S.i(f"v_bfe_u32 {v(TB)}, {v(vTAG)}, 0, 8\nv_bfe_u32 {v(TB+1)}, {v(vTAG)}, 8, 8")
        S.i(f"{MF16} {v(KV,4)}, {v(PK+4,4)}, {v(PV+4,4)}, {v(KV,4)}")
        S.i(f"v_bfe_u32 {v(TB+2)}, {v(vTAG)}, 16, 8\nv_bfe_u32 {v(TB+3)}, {v(vTAG)}, 24, 8")
        S.i(f"{MF16} {v(Z,4)}, {v(PK,4)}, {v(vONES,4)}, 0")
        S.i(f"v_lshrrev_b32 {v(vKA)}, 3, {v(vL)}\nv_and_b32 {v(vZA)}, 0x70, {v(vL16)}")
        S.i(f"{MF16} {v(Z,4)}, {v(PK+4,4)}, {v(vONES,4)}, {v(Z,4)}")
        S.i(f"v_lshl_add_u32 {v(vKA)}, {v(vKA)}, 12, {v(vZA)}\nv_and_b32 {v(vZA)}, 0x30, {v(vL)}")
        S.i(f"s_lshl_b32 s{sT2}, s{sJ}, 2\ns_add_u32 s{sT2}, s{sT2}, s{sWV}")
        S.i(f"s_lshl_b32 s{sT0}, s{sT2}, 15\ns_lshl_b32 s{sT1}, s{sRB}, 7\ns_add_u32 s{sT0}, s{sT0}, s{sT1}\ns_add_u32 s{sT0}, s{sT0}, {WS_KVP}")
        for k in range(4):
            S.i(f"v_and_or_b32 {v(KV+k)}, {v(KV+k)}, s{sMASK}, {v(TB+k)}")
        S.i(f"buffer_store_dwordx4 {v(KV,4)}, {v(vKA)}, {srd(SWS)}, s{sT0} offen sc1")
        S.i(f"s_lshl_b32 s{sT3}, s{sT2}, 11\ns_lshr_b32 s{sT1}, s{sT1}, 1\ns_add_u32 s{sT1}, s{sT1}, s{sT3}\ns_add_u32 s{sT1}, s{sT1}, {WS_ZP}")
        for k in range(4):
            S.i(f"v_and_or_b32 {v(Z+k)}, {v(Z+k)}, s{sMASK}, {v(TB+k)}")
        S.i("s_mov_b32 exec_lo, 0x00010001\ns_mov_b32 exec_hi, 0x00010001")
        S.i(f"buffer_store_dwordx4 {v(Z,4)}, {v(vZA)}, {srd(SWS)}, s{sT1} offen sc1")
        S.i("s_mov_b64 exec, -1")
        self.stamp((1,))
        S.i(f"s_add_u32 s{sT3}, s{sT3}, s{sG}\ns_add_u32 s{sT3}, s{sT3}, {G_PQ}")
        self.pqst = []
        for tt in range(2):
            for i2 in range(2):
                t = 2 * tt + i2
                for h in range(2):
                    r = aQ + 4 * t + 2 * h
                    S.i(f"v_pk_fma_f32 {v(r,2)}, {v(r,2)}, {v(LR+2*t,2)}, {sp(sEPS)} op_sel_hi:[1,0,1]")
                    S.i(f"v_pk_fma_f32 {v(r,2)}, {v(LR+2*t,2)}, {v(cQ+2*h,2)}, {v(r,2)} op_sel:[1,0,0] neg_lo:[1,0,0] neg_hi:[1,0,0]")
                    phi(S, r, PQ + 4 * tt + 2 * i2 + h)
            q = PQ + 4 * tt
            S.i(f"v_permlane16_swap_b32 {v(q)}, {v(q+2)}\nv_permlane16_swap_b32 {v(q+1)}, {v(q+3)}")
            self.pqst.append(S.i(f"buffer_store_dwordx4 {v(q,4)}, {v(vL16)}, {srd(SWS)}, s{sT3} offen offset:{tt*1024} sc1"))
        self.stamp((0, 1, 2))

    vW1R = vA0
    vW1X = vA0 + 3
    vKW, vZW, vZG, vKR = vA0 + 6, vA0 + 7, vA0 + 8, vA0 + 9
    vWOo, vWOx, vEXW, vEXR, vHS, vSS = vA0 + 10, vA0 + 11, vA0 + 12, vA0 + 13, vA0 + 14, vA0 + 15
    CS = V0
    B1R = V0 + 12
    B2R = V0 + 16
    P0 = V0 + 20
    WOA = 72

    def rd_w1(self, Q, s):
        loc = self.w1loc(s)
        base, off = (self.vW1R, loc) if loc < LDS_B else (self.vW1X, 0) if s == 5 else (self.vW1X, loc - LDS_B)
        toks = []
        for i in range(3):
            for rd in range(2):
                toks.append(Q.i(f"ds_read_b64_tr_b16 {a((s*3+i)*4+2*rd,2)}, {v(base+i)} offset:{off + rd*3072}"))
        return toks

    def cs_w1(self, Q, s):
        for i in range(3):
            Q.i(f"{MF16} {v(self.CS+4*i,4)}, {v(vONES,4)}, {a((s*3+i)*4,4)}, {'0' if s == 0 else v(self.CS+4*i,4)}")

    def gap1(self):
        S = self.S
        P0 = self.P0
        t0, t1, t2, t3 = P0, P0 + 1, P0 + 2, P0 + 3
        RA, RS, RTG, RD, RT = P0 + 4, P0 + 5, P0 + 6, P0 + 8, P0 + 24
        self.w1t = w1t = {}

        def red_loads(track):
            S.i(f"s_mov_b32 s{sT2}, s{sR0}")
            for k in range(4):
                x = S.i(f"buffer_load_dwordx4 {v(RD+4*k,4)}, {v(RA)}, {srd(SWS)}, s{sT2} offen sc1")
                if not track:
                    x.wr = set()
                if k < 3:
                    S.i(f"s_add_u32 s{sT2}, s{sT2}, s{sR1}")

        for s in range(self.RPOS):
            w1t[s] = self.dma_w1(S, s)
        l1, lz, lgo = self.label("r"), self.label("rz"), self.label("rgo")
        S.i(f"s_mov_b32 s{sR1}, 0\nv_mov_b32 {v(RA)}, {v(vL16)}\nv_and_b32 {v(RS)}, 0x70, {v(vL16)}")
        S.i(f"s_lshl_b32 s{sR0}, s2, 12\ns_add_u32 s{sR0}, s{sR0}, {WS_KVP}\ns_lshl_b32 s{sR2}, s2, 7\ns_add_u32 s{sR2}, s{sR2}, {WS_KVF}")
        S.i(f"s_cmp_gt_u32 s{sWV}, 1\ns_cbranch_scc1 {l1}")
        S.opt_begin()
        S.i(f"s_cmp_eq_u32 s{sWV}, 1\ns_cbranch_scc1 {lz}\ns_mov_b32 s{sR1}, 1024\ns_branch {lgo}")
        S.i(f"{lz}:\ns_cmp_lg_u32 s{sXCD}, 0\ns_cbranch_scc1 {l1}")
        S.i(f"v_lshlrev_b32 {v(RS)}, 4, {v(l3)}\nv_lshrrev_b32 {v(RA)}, 3, {v(vL)}\nv_lshl_add_u32 {v(RA)}, {v(RA)}, 6, {v(RS)}")
        S.i(f"s_lshl_b32 s{sR0}, s2, 8\ns_add_u32 s{sR0}, s{sR0}, {WS_ZP}\ns_mov_b32 s{sR1}, 512")
        S.i(f"s_lshl_b32 s{sR2}, s2, 3\ns_add_u32 s{sR2}, s{sR2}, {WS_ZF}")
        S.i(f"{lgo}:")
        red_loads(False)
        S.opt_end()
        S.i(f"{l1}:")
        D = Seq()
        for s in range(self.RPOS, self.R1A):
            w1t[s] = self.dma_w1(D, s)
        nafter = 3 * (self.R1A - self.RPOS)
        Q = Seq()
        vW1R, vW1X = self.vW1R, self.vW1X
        Q.i(f"v_lshl_add_u32 {v(RS)}, {v(g4)}, 2, {v(RS)}")
        Q.i(f"v_and_b32 {v(t0)}, 16, {v(vL)}\nv_lshrrev_b32 {v(RTG)}, {v(t0)}, {v(vTAG)}\nv_and_b32 {v(RTG)}, 0xffff, {v(RTG)}")
        Q.i(f"s_lshl_b32 s{sT2}, s{sKH}, 1\nv_and_b32 {v(t0)}, 2, {v(r4)}\nv_xor_b32 {v(t0)}, s{sT2}, {v(t0)}")
        Q.i(f"v_and_or_b32 {v(t0)}, {v(g4)}, 1, {v(t0)}\nv_lshlrev_b32 {v(t0)}, 5, {v(t0)}")
        Q.i(f"v_lshl_add_u32 {v(t0)}, {v(l3)}, 3, {v(t0)}\nv_lshl_add_u32 {v(t0)}, {v(r4)}, 7, {v(t0)}")
        Q.i(f"s_lshl_b32 s{sT2}, s{sKH}, 15\ns_add_u32 s{sT2}, s{sT2}, {LDS_B}")
        Q.i(f"v_lshl_add_u32 {v(t0)}, {v(hh)}, 9, {v(t0)}\nv_add_u32 {v(self.vWOo)}, s{sT2}, {v(t0)}\nv_xor_b32 {v(self.vWOx)}, 64, {v(self.vWOo)}")
        Q.i(f"v_and_b32 {v(t0)}, 1, {v(g4)}\nv_lshl_add_u32 {v(t0)}, {v(t0)}, 2, {v(r4)}")
        Q.i(f"v_mul_u32_u24 {v(t1)}, 6144, {v(hh)}")
        Q.i(f"v_lshl_add_u32 {v(t1)}, {v(t0)}, 7, {v(t1)}\nv_lshl_add_u32 {v(t1)}, {v(l3)}, 3, {v(t1)}")
        Q.i(f"v_and_b32 {v(t2)}, 1, {v(t0)}\nv_lshl_add_u32 {v(t2)}, {v(t2)}, 1, s{sWV}\nv_lshrrev_b32 {v(t0)}, 1, {v(t0)}")
        Q.i(f"v_and_b32 {v(t3)}, 3, {v(t2)}\nv_xor_b32 {v(t3)}, {v(t3)}, {v(t0)}\nv_lshl_add_u32 {v(t1)}, {v(t3)}, 5, {v(t1)}")
        Q.i(f"v_lshrrev_b32 {v(t2)}, 2, {v(t2)}")
        Q.i(f"v_lshl_add_u32 {v(vW1R)}, {v(t2)}, 10, {v(t1)}\nv_add_u32 {v(vW1R+1)}, 1024, {v(vW1R)}")
        Q.i(f"v_xor_b32 {v(t2)}, 1, {v(t2)}\nv_lshl_add_u32 {v(vW1R+2)}, {v(t2)}, 11, {v(t1)}")
        for i in range(3):
            Q.i(f"v_add_u32 {v(vW1X+i)}, {XSLOT}, {v(vW1R+i)}")
        S.extend(zipseq(list(Q), groups(D)) if len(D) else Q)
        S.wait(self.pqst)
        self.set_flag(0)
        self.stamp((2,))
        l2, lp, lchk, lpo = (self.label(x) for x in ("r", "rp", "rc", "rpo"))
        S.i(f"s_cmp_eq_u32 s{sR1}, 0\ns_cbranch_scc1 {l2}")
        S.opt_begin()
        S.i(f"s_mov_b32 s{sCNT}, 0\ns_waitcnt vmcnt({nafter + 1})\ns_branch {lchk}\n{lp}:")
        red_loads(True)
        S.i(f"s_add_u32 s{sCNT}, s{sCNT}, 1\ns_waitcnt vmcnt(0)\n{lchk}:")
        for k in range(4):
            d = RD + 4 * k
            S.i(f"v_perm_b32 {v(RT+k)}, {v(d+1)}, {v(d)}, s{sSEL0}\nv_perm_b32 {v(RT+4)}, {v(d+3)}, {v(d+2)}, s{sSEL1}")
            S.i(f"v_bitop3_b32 {v(RT+k)}, {v(RT+k)}, {v(RT+4)}, {v(vTAG)} bitop3:0x56")
        S.i(f"v_or3_b32 {v(RT)}, {v(RT)}, {v(RT+1)}, {v(RT+2)}\nv_or_b32 {v(RT)}, {v(RT)}, {v(RT+3)}")
        S.i(f"v_cmp_ne_u32 vcc, 0, {v(RT)}")
        S.i(f"s_cmp_gt_u32 s{sCNT}, 0x40000\ns_cbranch_scc1 {lpo}\ns_cbranch_vccnz {lp}\n{lpo}:")
        for k in range(16):
            S.i(f"v_and_b32 {v(RD+k)}, s{sMASK}, {v(RD+k)}")
        for h in range(2):
            S.i(f"v_pk_add_f32 {v(RD+2*h,2)}, {v(RD+2*h,2)}, {v(RD+4+2*h,2)}\nv_pk_add_f32 {v(RD+8+2*h,2)}, {v(RD+8+2*h,2)}, {v(RD+12+2*h,2)}")
        for h in range(2):
            S.i(f"v_pk_add_f32 {v(RD+2*h,2)}, {v(RD+2*h,2)}, {v(RD+8+2*h,2)}")
        self.reduce4(S, RD)
        S.i(f"v_cvt_pk_bf16_f32 {v(RD)}, {v(RD)}, {v(RD)}\nv_and_or_b32 {v(RD)}, {v(RD)}, s{sHI}, {v(RTG)}")
        S.i(f"s_mov_b32 exec_lo, 0x00ff00ff\ns_mov_b32 exec_hi, 0x00ff00ff")
        S.i(f"buffer_store_dword {v(RD)}, {v(RS)}, {srd(SWS)}, s{sR2} offen sc1\ns_mov_b64 exec, -1")
        S.opt_end()
        S.i(f"{l2}:")
        self.stamp((2,))
        S.i("s_barrier")
        W = Seq()
        for i in range(16):
            for o, base in ((0, self.vWOo), (4, self.vWOx)):
                for rd in range(2):
                    W.i(f"ds_read_b64_tr_b16 {a(self.WOA+8*i+o+2*rd,2)}, {v(base)} offset:{i*2048 + rd*1024}")
        D = Seq()
        for s in range(self.R1A, 6):
            w1t[s] = self.dma_w1(D, s)
        S.extend(zipseq(list(W), groups(D)) if len(D) else W)
        S.i(f"v_and_b32 {v(self.vZG)}, 0x1f0, {v(vL16)}")
        S.i(f"s_mul_i32 s{sT2}, s{sWV}, {8*544}\ns_add_u32 s{sT2}, s{sT2}, {KVL}")
        S.i(f"v_lshlrev_b32 {v(t0)}, 4, {v(l15)}\nv_lshl_add_u32 {v(t0)}, {v(hh)}, 8, {v(t0)}")
        S.i(f"v_and_b32 {v(t1)}, 1, {v(g4)}\nv_lshl_add_u32 {v(t2)}, {v(t1)}, 3, {v(t0)}\nv_add_u32 {v(self.vKW)}, s{sT2}, {v(t2)}")
        S.i(f"v_lshl_add_u32 {v(self.vHS)}, {v(t1)}, 14, {v(t0)}")
        S.i(f"v_lshrrev_b32 {v(t2)}, 2, {v(t0)}\nv_lshl_add_u32 {v(self.vSS)}, {v(t1)}, 11, {v(t2)}")
        S.i(f"v_bfe_u32 {v(t2)}, {v(vL)}, 2, 3\nv_mul_u32_u24 {v(t2)}, 544, {v(t2)}\nv_lshl_add_u32 {v(t2)}, {v(l3)}, 3, {v(t2)}\nv_add_u32 {v(self.vZW)}, s{sT2}, {v(t2)}")
        S.i(f"v_lshlrev_b32 {v(t2)}, 4, {v(hh)}\nv_add_u32 {v(t2)}, 512, {v(t2)}\nv_cmp_eq_u32 vcc, 0, {v(t1)}")
        S.i(f"s_mul_i32 s{sT2}, s{sKH}, {16*544}\ns_add_u32 s{sT2}, s{sT2}, {KVL}")
        S.i(f"v_cndmask_b32 {v(t0)}, {v(t0)}, {v(t2)}, vcc\nv_add_u32 {v(self.vKR)}, s{sT2}, {v(t0)}")
        for dst, xr in ((self.vEXW, 0), (self.vEXR, 2)):
            S.i(f"s_xor_b32 s{sT2}, s{sWV}, {xr}\ns_lshl_b32 s{sT3}, s{sT2}, 12\ns_add_u32 s{sT3}, s{sT3}, {XSLOT - 4096}")
            S.i(f"s_cmp_eq_u32 s{sT2}, 0\ns_cselect_b32 s{sT3}, 61440, s{sT3}\nv_add_u32 {v(dst)}, s{sT3}, {v(vL16)}")
        self.stamp((2,))
        self.PQF = PQF = P0 + 4
        GD, GT = P0 + 68, P0 + 104
        S.i(f"s_lshl_b32 s{sT0}, s{sKH}, 15\ns_lshl_b32 s{sT1}, s{sTT}, 10\ns_add_u32 s{sT0}, s{sT0}, s{sT1}\ns_add_u32 s{sT0}, s{sT0}, s{sG}\ns_add_u32 s{sT0}, s{sT0}, {G_PQ}")
        S.i(f"s_lshl_b32 s{sR0}, s{sWV}, 13\ns_add_u32 s{sR0}, s{sR0}, {WS_KVF}\ns_add_u32 s{sR1}, s{sR0}, 4096")
        S.i(f"s_lshl_b32 s{sR2}, s{sWV}, 9\ns_add_u32 s{sR2}, s{sR2}, {WS_ZF}")
        self.poll_loop(0, sG)
        self.stamp((0, 2))
        L = Seq()
        for i in range(16):
            if i and not i & 1:
                L.i(f"s_add_u32 s{sT0}, s{sT0}, 4096")
            L.i(f"buffer_load_dwordx4 {v(PQF+4*i,4)}, {v(vL16)}, {srd(SWS)}, s{sT0} offen offset:{(i&1)*2048} sc1")

        def kv_loads(Q):
            for k in range(8):
                Q.i(f"buffer_load_dwordx4 {v(GD+4*k,4)}, {v(vL16)}, {srd(SWS)}, s{sR0 if k < 4 else sR1} offen offset:{(k&3)*1024} sc1")
            return Q.i(f"buffer_load_dwordx4 {v(GD+32,4)}, {v(self.vZG)}, {srd(SWS)}, s{sR2} offen sc1")

        kvl = kv_loads(L)
        L.i(f"s_mul_i32 s{sT1}, s{sJ}, 384\ns_lshl_b32 s{sT2}, s{sWV}, 5\ns_add_u32 s{sT1}, s{sT1}, s{sT2}\nv_lshlrev_b32 {v(t0)}, 1, {v(l15)}")
        for i in range(3):
            L.i(f"buffer_load_ushort {v(self.B1R+i)}, {v(t0)}, {srd(SB1)}, s{sT1} offen offset:{128*i}")
        L.i(f"s_lshl_b32 s{sT1}, s{sJ}, 7\ns_add_u32 s{sT1}, s{sT1}, s{sT2}\nv_lshlrev_b32 {v(t1)}, 3, {v(hh)}")
        for q in range(2):
            L.i(f"buffer_load_dwordx2 {v(self.B2R+2*q,2)}, {v(t1)}, {srd(SB2)}, s{sT1} offen offset:{16*q}")
        for s in range(6, 6 + self.R2A):
            w1t[s] = self.dma_w1(L, s)
        LG = groups(L)
        for g in LG[:8]:
            S.extend(g)
        S.wait(W[-1])
        S.i("s_barrier")
        R, C = Seq(), Seq()
        for s in range(6):
            self.rd_w1(R, s)
            self.cs_w1(C, s)
        self.AO, self.AX = P0 + 108, P0 + 124
        self.CI = P0 + 140
        for q in range(4):
            C.i(f"v_lshlrev_b32 {v(self.AO+4*q)}, 16, {v(vXR+2*q)}\nv_and_b32 {v(self.AO+4*q+1)}, s{sHI}, {v(vXR+2*q)}")
            C.i(f"v_lshlrev_b32 {v(self.AO+4*q+2)}, 16, {v(vXR+2*q+1)}\nv_and_b32 {v(self.AO+4*q+3)}, s{sHI}, {v(vXR+2*q+1)}")
        for k in range(16):
            C.i(f"v_mov_b32 {v(self.CI+k)}, {'s%d' % sEPS if k < 8 else '0'}")
        for i in range(3):
            C.i(f"v_add_u32 {v(self.vW1X+i)}, {LDS_B}, {v(self.vW1R+i)}")
        S.extend(zipseq(list(R) + list(C), LG[8:]))
        self.stamp((2,))
        lp, lchk, lpo = self.label("gp"), self.label("gc"), self.label("gpo")
        S.wait(kvl)
        S.i(f"s_mov_b32 s{sCNT}, 0\ns_branch {lchk}\n{lp}:")
        S.opt_begin()
        kv_loads(S)
        S.i(f"s_add_u32 s{sCNT}, s{sCNT}, 1\ns_waitcnt vmcnt(0)")
        S.opt_end()
        S.i(f"{lchk}:\nv_mov_b32 {v(GT)}, 0")
        for k in range(9):
            d = GD + 4 * k
            S.i(f"v_perm_b32 {v(GT+1)}, {v(d+1)}, {v(d)}, s{sSEL2}\nv_perm_b32 {v(GT+2)}, {v(d+3)}, {v(d+2)}, s{sSEL2}")
            S.i(f"v_bitop3_b32 {v(GT)}, {v(GT)}, {v(GT+1)}, {v(vTAG)} bitop3:0xf6")
            S.i(f"v_bitop3_b32 {v(GT)}, {v(GT)}, {v(GT+2)}, {v(vTAG)} bitop3:0xf6")
        S.i(f"v_cmp_ne_u32 vcc, 0, {v(GT)}")
        S.i(f"s_cmp_gt_u32 s{sCNT}, 0x40000\ns_cbranch_scc1 {lpo}\ns_cbranch_vccnz {lp}\n{lpo}:")
        self.stamp((2,))
        kvw = []
        for k in range(9):
            d = GD + 4 * k
            S.i(f"v_perm_b32 {v(d)}, {v(d+1)}, {v(d)}, s{sSEL3}\nv_perm_b32 {v(d+1)}, {v(d+3)}, {v(d+2)}, s{sSEL3}")
            if k < 8:
                kvw.append(S.i(f"ds_write_b64 {v(self.vKW)}, {v(d,2)} offset:{k*544}"))
            else:
                kvw.append(S.i(f"ds_write_b64 {v(self.vZW)}, {v(d,2)} offset:512"))
        S.wait(kvw)
        S.i("s_barrier")
        self.stamp((0, 2))

    def reduce4(self, S, d):
        S.i(f"v_permlane16_swap_b32 {v(d)}, {v(d+1)}\nv_permlane16_swap_b32 {v(d+2)}, {v(d+3)}")
        S.i(f"v_add_f32 {v(d)}, {v(d)}, {v(d+1)}\nv_add_f32 {v(d+2)}, {v(d+2)}, {v(d+3)}")
        S.i(f"v_permlane32_swap_b32 {v(d)}, {v(d+2)}")
        S.i(f"v_add_f32 {v(d+1)}, {v(d)}, {v(d+2)}")
        S.i(f"v_add_f32_dpp {v(d)}, {v(d+1)}, {v(d+1)} row_ror:8 row_mask:0xf bank_mask:0xf")

    def p2(self):
        S = self.S
        P0, PQF, AO, AX, CI = self.P0, self.PQF, self.AO, self.AX, self.CI
        NB = [P0 + 68, P0 + 84]
        OB = [P0 + 100, P0 + 104]
        KF = [P0 + 156, P0 + 160, P0 + 164]
        RC = P0 + 168
        HP = P0 + 172

        def rd_kv(Q, i):
            return Q.i(f"ds_read_b128 {v(KF[i%3],4)}, {v(self.vKR)} offset:{i*544}")

        def mf_n(Q, i):
            Q.i(f"{MF32} {v(NB[i&1],16)}, {v(KF[i%3],4)}, {v(PQF+4*i,4)}, {v(CI,16)}")

        D = Seq()
        for s in range(6 + self.R2A, 16 - self.R2C):
            self.w1t[s] = self.dma_w1(D, s)
        DG = groups(D)
        lne = self.label("ne")
        kt = {i: rd_kv(S, i) for i in range(3)}
        S.i(f"s_or_b32 s{sT2}, s2, s{sWV}\ns_cmp_lg_u32 s{sT2}, 0\ns_cbranch_scc1 {lne}")
        S.opt_begin()
        S.i(f"s_mov_b64 exec, 1\nbuffer_store_dword {v(vTAG)}, off, {srd(SWS)}, 0 sc1\ns_mov_b64 exec, -1")
        S.opt_end()
        S.i(f"{lne}:")
        mf_n(S, 0)
        nd = 0

        def dma_some(i, part):
            nonlocal nd
            want = min(len(DG), ((3 * i + part + 1) * len(DG) + 38) // 39)
            while nd < want:
                S.extend(DG[nd])
                nd += 1

        for i in range(17):
            N, O = NB[i & 1], OB[i & 1]
            wo = self.WOA + 8 * (i - 1)
            if i + 1 < 16:
                mf_n(S, i + 1)
            if i + 3 < 16:
                kt[i + 3] = rd_kv(S, i + 3)
            dma_some(i, 0)
            if i < 16:
                S.i(f"v_rcp_f32 {v(RC)}, {v(N)}")
                if i + 2 < 16:
                    S.wait(kt[i + 2])
                for k in range(3):
                    S.i(f"v_mul_f32 {v(N+8+k)}, {v(N+8+k)}, {v(RC)}")
            if i > 0:
                S.i(f"{MF32} {v(AO,16)}, {a(wo,4)}, {v(OB[(i-1)&1],4)}, {v(AO,16)}")
            dma_some(i, 1)
            if i < 16:
                for k in range(3, 8):
                    S.i(f"v_mul_f32 {v(N+8+k)}, {v(N+8+k)}, {v(RC)}")
            if i > 0:
                S.i(f"{MF32} {v(AX,16)}, {a(wo+4,4)}, {v(OB[(i-1)&1],4)}, {'0' if i == 1 else v(AX,16)}")
            dma_some(i, 2)
            if i < 16:
                for h in range(4):
                    S.i(f"v_cvt_pk_bf16_f32 {v(O+h)}, {v(N+8+2*h)}, {v(N+9+2*h)}")
        self.stamp((3,))
        S.i(f"s_lshl_b32 s{sT0}, s{sJ}, 1\ns_add_u32 s{sT0}, s{sT0}, s{sKH}\ns_lshl_b32 s{sT1}, s{sTT}, 5\ns_add_u32 s{sT0}, s{sT0}, s{sT1}")
        S.i(f"s_lshl_b32 s{sT1}, s{sT0}, 7\ns_lshl_b32 s{sT0}, s{sT0}, 10\ns_add_u32 s{sT0}, s{sT0}, s{sG}\ns_add_u32 s{sT1}, s{sT1}, s{sG}")
        S.i(f"s_add_u32 s{sT0}, s{sT0}, {G_H}\ns_add_u32 s{sT1}, s{sT1}, {G_ST}")
        toks = [S.i(f"ds_write_b128 {v(self.vEXW)}, {v(AX+4*q,4)} offset:{q*1024}") for q in range(4)]
        S.wait(toks, self.w1t[10])
        S.i("s_barrier")
        for q in range(4):
            S.i(f"ds_read_b128 {v(NB[0]+4*q,4)}, {v(self.vEXR)} offset:{q*1024}")
        self.hst = []
        for c in range(2):
            for h in range(4):
                r = AO + 8 * c + 2 * h
                S.i(f"v_pk_add_f32 {v(r,2)}, {v(r,2)}, {v(NB[0]+8*c+2*h,2)}")
                S.i(f"v_cvt_pk_bf16_f32 {v(HP+4*c+h)}, {v(r)}, {v(r+1)}")
            self.hst.append(S.i(f"buffer_store_dwordx4 {v(HP+4*c,4)}, {v(self.vHS)}, {srd(SWS)}, s{sT0} offen offset:{c*512} sc1"))
        d1, d2 = RC, RC + 1
        for k in range(8):
            S.i(f"v_dot2_f32_bf16 {v(d1)}, {v(HP+k)}, {v(vONES)}, {'0' if k == 0 else v(d1)}")
            S.i(f"v_dot2_f32_bf16 {v(d2)}, {v(HP+k)}, {v(HP+k)}, {'0' if k == 0 else v(d2)}")
        S.i(f"v_permlane32_swap_b32 {v(d1)}, {v(d2)}\nv_add_f32 {v(d1)}, {v(d1)}, {v(d2)}")
        self.hst.append(S.i(f"buffer_store_dword {v(d1)}, {v(self.vSS)}, {srd(SWS)}, s{sT1} offen sc1"))
        self.stamp((0, 3))

    vHR, vRW, vRR, vRES = vA0 + 6, vA0 + 7, vA0 + 8, vA0 + 9
    vW2o, vW2x, vW2Co, vW2Cx = vA0 + 10, vA0 + 11, vA0 + 12, vA0 + 13

    def w2reg(self, n, o, w):
        if n < 8:
            return a(192 + 8 * n + o, w)
        if n < 11:
            return v(self.W2V + 8 * (n - 8) + o, w)
        return a(8 * (n - 11) + o, w)

    def rd_w2(self, Q, n):
        loc = self.w2loc(n)
        ro, rx, off = (self.vW2o, self.vW2x, loc) if loc < LDS_B else (self.vW2Co, self.vW2Cx, loc - LDS_C)
        toks = []
        for o, rg in ((0, ro), (4, rx)):
            for rd in range(2):
                toks.append(Q.i(f"ds_read_b64_tr_b16 {self.w2reg(n, o+2*rd, 2)}, {v(rg)} offset:{off + rd*512}"))
        return toks

    def gap2(self):
        S = self.S
        P0 = self.P0
        t0, t1, t2, t3 = P0, P0 + 1, P0 + 2, P0 + 3
        self.CA = CA = P0 + 4
        self.SD = SD = P0 + 16
        self.W2V = P0 + 24
        self.P3 = P0 + 48
        w1t = self.w1t
        self.w2t = w2t = {}
        last = list(range(16 - self.R2C, 16))
        mid = list(range(11, 16 - self.R2C))
        D = Seq()
        for s in last:
            w1t[s] = self.dma_w1(D, s)

        def rdcs(steps):
            R = Seq()
            for s in steps:
                self.rd_w1(R, s)
                if s > steps[0]:
                    self.cs_w1(R, s - 1)
            if steps:
                self.cs_w1(R, steps[-1])
            return R

        S.extend(zipseq(list(rdcs(range(6, 11))), groups(D)))
        S.i(f"v_add_u32 {v(self.vHR)}, {LDS_B}, {v(vL16)}")
        S.i(f"s_lshl_b32 s{sT2}, s{sWV}, 9\ns_add_u32 s{sT2}, s{sT2}, {STATS}")
        S.i(f"v_lshl_add_u32 {v(t0)}, {v(l3)}, 2, {v(g4)}\nv_lshl_add_u32 {v(self.vRW)}, {v(t0)}, 5, s{sT2}")
        S.i(f"v_lshlrev_b32 {v(t0)}, 5, {v(l15)}\nv_add_u32 {v(self.vRR)}, {STATS}, {v(t0)}")
        S.i(f"s_lshl_b32 s{sT2}, s{sJ}, 11\ns_lshl_b32 s{sT3}, s{sWV}, 9\ns_add_u32 s{sT2}, s{sT2}, s{sT3}\ns_add_u32 s{sT2}, s{sT2}, {LDS_B}")
        S.i(f"v_add_u32 {v(self.vRES)}, s{sT2}, {v(self.vHS)}")
        S.i(f"v_and_b32 {v(t0)}, 2, {v(r4)}\nv_and_or_b32 {v(t0)}, {v(g4)}, 1, {v(t0)}\nv_xor_b32 {v(t0)}, s{sWV}, {v(t0)}")
        S.i(f"v_lshl_add_u32 {v(t0)}, {v(t0)}, 5, s{sLW2}\nv_lshl_add_u32 {v(t0)}, {v(l3)}, 3, {v(t0)}")
        S.i(f"v_lshl_add_u32 {v(t0)}, {v(r4)}, 7, {v(t0)}\nv_lshl_add_u32 {v(self.vW2o)}, {v(hh)}, 10, {v(t0)}\nv_xor_b32 {v(self.vW2x)}, 64, {v(self.vW2o)}")
        S.i(f"v_add_u32 {v(self.vW2Co)}, {LDS_C}, {v(self.vW2o)}\nv_add_u32 {v(self.vW2Cx)}, {LDS_C}, {v(self.vW2x)}")
        for k in range(12):
            S.i(f"v_mov_b32 {v(CA+k)}, 0")
        S.i(f"s_lshl_b32 s{sT1}, s{sWV}, 12\ns_add_u32 s{sT0}, s{sT1}, s{sG}\ns_add_u32 s{sT0}, s{sT0}, {G_H}")
        S.i(f"s_add_u32 s{sT2}, s{sLW2}, s{sG}\ns_add_u32 s{sT2}, s{sT2}, {G_ST}")
        self.stamp((3,))
        S.wait(self.hst)
        self.set_flag(1)
        self.stamp((3,))
        S.i("s_barrier")
        D = Seq()
        for n in (8, 9, 10):
            w2t[n] = self.dma_w2(D, n)
        S.extend(zipseq(list(rdcs(mid)), groups(D)))
        self.stamp((3,))
        self.poll_loop(1, sG)
        self.stamp((3,))
        self.ht = []
        S.i(f"s_add_u32 m0, s{sT1}, {LDS_B}")
        for u in range(2):
            for k in range(4):
                x = S.i(f"buffer_load_dwordx4 {v(vL16)}, {srd(SWS)}, s{sT0} offen offset:{k*1024} sc1 lds")
            self.ht.append(x)
            if u == 0:
                for k in range(2):
                    S.i(f"buffer_load_dwordx4 {v(SD+4*k,4)}, {v(vL16)}, {srd(SWS)}, s{sT2} offen offset:{k*1024} sc1")
            S.i(f"s_add_u32 s{sT0}, s{sT0}, 16384\ns_add_u32 m0, m0, 16384")
        S.i("s_barrier")
        S.extend(rdcs(last))
        S.i("s_mov_b64 exec, 0xffff")
        for i in range(3):
            c, d = self.CS + 4 * i, CA + 4 * i
            S.i(f"v_cvt_pk_bf16_f32 {v(t0)}, {v(c)}, {v(c)}\nv_and_b32 {v(t0)}, s{sHI}, {v(t0)}\nv_sub_f32 {v(t0)}, {v(c)}, {v(t0)}")
            S.i(f"v_cvt_pk_bf16_f32 {v(d)}, {v(c)}, {v(t0)}\nv_perm_b32 {v(d+1)}, {v(self.B1R+i)}, {v(d)}, s{sSEL2}\nv_mov_b32 {v(d+2)}, {v(self.B1R+i)}")
        S.i("s_mov_b64 exec, -1")
        self.stamp((3,))

    def p3(self):
        S = self.S
        B = self.P3
        AC = B
        HF = [B + 24 + 4 * k for k in range(4)]
        SA = B + 40
        KC = [B + 44, B + 48]
        GT = B + 52
        PP = B + 60
        RES = B + 72
        self.RES = RES
        SD, CA = self.SD, self.CA
        w2t = self.w2t
        acc = lambda t, i: AC + ((t & 1) * 3 + i) * 4
        c0 = -2.0 * math.sqrt(2.0 / math.pi) * math.log2(math.e)
        sH1 = sR0
        S.i(f"s_mul_i32 s{sH1}, s{sWV}, 24576\ns_mul_i32 s{sT2}, s{sJ}, 3072\ns_add_u32 s{sH1}, s{sH1}, s{sG}\ns_add_u32 s{sH1}, s{sH1}, {G_H1}")
        S.i(f"s_add_u32 s{sR2}, s{sH1}, 0\ns_add_u32 s{sH1}, s{sH1}, s{sT2}\ns_add_u32 s{sH1+1}, s{sH1}, 98304")

        def rd_h(Q, n):
            return Q.i(f"ds_read_b128 {v(HF[n%4],4)}, {v(self.vHR)} offset:{n*1024}")

        def gelu(t, packed):
            Q = Seq()
            k = KC[t & 1]
            toks = []
            for i in range(3):
                for h in range(2):
                    r = acc(t, i) + 2 * h
                    E = GT + 2 * ((2 * i + h) % 4)
                    if packed:
                        Q.i(f"v_pk_mul_f32 {v(E,2)}, {v(r,2)}, {v(r,2)}")
                        Q.i(f"v_pk_fma_f32 {v(E,2)}, {v(E,2)}, {v(k,2)}, {v(k,2)} op_sel:[0,0,1] op_sel_hi:[1,0,1]")
                        Q.i(f"v_pk_mul_f32 {v(E,2)}, {v(E,2)}, {v(r,2)}")
                        Q.i(f"v_exp_f32 {v(E)}, {v(E)}\nv_exp_f32 {v(E+1)}, {v(E+1)}")
                        Q.i(f"v_pk_fma_f32 {v(E,2)}, {v(E,2)}, {v(k+2,2)}, {v(k+2,2)} op_sel_hi:[1,0,0]")
                        Q.i(f"v_rcp_f32 {v(E)}, {v(E)}\nv_rcp_f32 {v(E+1)}, {v(E+1)}")
                        Q.i(f"v_pk_mul_f32 {v(E,2)}, {v(E,2)}, {v(r,2)}")
                    else:
                        for op in ("v_mul_f32 {e}, {x}, {x}", "v_fma_f32 {e}, {e}, {k1}, {k0}", "v_mul_f32 {e}, {e}, {x}", "v_exp_f32 {e}, {e}",
                                   "v_fma_f32 {e}, {e}, {sg}, {sg}", "v_rcp_f32 {e}, {e}", "v_mul_f32 {e}, {e}, {x}"):
                            for z in range(2):
                                Q.i(op.format(e=v(E + z), x=v(r + z), k1=v(k), k0=v(k + 1), sg=v(k + 2)))
                    Q.i(f"v_cvt_pk_bf16_f32 {v(PP+4*i+2*(t&1)+h)}, {v(E)}, {v(E+1)}")
                if t & 1:
                    P = PP + 4 * i
                    Q.i(f"v_permlane16_swap_b32 {v(P)}, {v(P+2)}\nv_permlane16_swap_b32 {v(P+1)}, {v(P+3)}")
                    toks.append(Q.i(f"buffer_store_dwordx4 {v(P,4)}, {v(vL16)}, {srd(SWS)}, s{sH1 + (t >> 1)} offen offset:{i*1024} sc1"))
            return Q, toks

        ST = Seq()
        for k in range(4):
            ST.i(f"v_add_f32 {v(SD+k)}, {v(SD+k)}, {v(SD+4+k)}")
        self.reduce4(ST, SD)
        m, q, r_, x = SD, SD + 1, SD + 2, SD + 3
        R0, R1 = GT, GT + 4
        inv = f2u(1.0 / 512)
        ST.i(f"v_mov_b32_dpp {v(q)}, {v(m)} row_ror:4 row_mask:0xf bank_mask:0xf")
        ST.i(f"v_mul_f32 {v(m)}, {f2u(-1.0/512):#x}, {v(m)}\nv_mul_f32 {v(q)}, {inv:#x}, {v(q)}")
        ST.i(f"v_fma_f32 {v(q)}, -{v(m)}, {v(m)}, {v(q)}\nv_max_f32 {v(q)}, 0, {v(q)}\nv_add_f32 {v(q)}, {f2u(1e-5):#x}, {v(q)}")
        ST.i(f"v_rsq_f32 {v(r_)}, {v(q)}\nv_cvt_pk_bf16_f32 {v(R0)}, {v(m)}, {v(m)}")
        ST.i(f"v_mul_f32 {v(R1+2)}, {v(q)}, {v(r_)}\nv_and_b32 {v(x)}, s{sHI}, {v(R0)}\nv_sub_f32 {v(x)}, {v(m)}, {v(x)}")
        ST.i(f"v_cvt_pk_bf16_f32 {v(R0+1)}, {v(x)}, {v(R1+2)}\nv_mul_f32 {v(R1+1)}, {f2u(c0):#x}, {v(r_)}\nv_mul_f32 {v(r_)}, {v(r_)}, {v(r_)}")
        ST.i(f"v_and_b32 {v(x)}, s{sHI}, {v(R0+1)}\nv_sub_f32 {v(x)}, {v(R1+2)}, {v(x)}\nv_mul_f32 {v(r_)}, {f2u(0.044715):#x}, {v(r_)}")
        ST.i(f"v_cvt_pk_bf16_f32 {v(R0+2)}, {v(x)}, 0\nv_mov_b32 {v(R0+3)}, 0\nv_mul_f32 {v(R1)}, {v(r_)}, {v(R1+1)}")
        g = Seq()
        g.i("s_mov_b32 exec_lo, 0x000f000f\ns_mov_b32 exec_hi, 0x000f000f")
        g.i(f"ds_write_b128 {v(self.vRW)}, {v(R0,4)}")
        stw = g.i(f"ds_write_b96 {v(self.vRW)}, {v(R1,3)} offset:16")
        g.i("s_mov_b64 exec, -1")
        STL = list(ST) + [list(g)]

        HD = Seq()
        for u in (2, 3):
            HD.i(f"s_add_u32 m0, s{sT1}, {LDS_B + u*16384}")
            for k in range(4):
                x_ = HD.i(f"buffer_load_dwordx4 {v(vL16)}, {srd(SWS)}, s{sT0} offen offset:{k*1024} sc1 lds")
            self.ht.append(x_)
            if u == 2:
                HD.i(f"s_add_u32 s{sT0}, s{sT0}, 16384")
        S.wait(self.ht[0])
        S.i("s_barrier")
        self.stamp((0, 3, 4))
        hk = {n: rd_h(S, n) for n in range(3)}
        h1st = {}
        for t in range(4):
            M = Seq()
            for ks in range(16):
                for i in range(3):
                    M.i(f"{MF16} {v(acc(t,i),4)}, {a((ks*3+i)*4,4)}, {v(HF[(16*t+ks)%4],4)}, {'0' if ks == 0 else v(acc(t,i),4)}")
            for i in range(3):
                M.i(f"{MF16} {v(acc(t,i),4)}, {v(CA+4*i,4)}, {v(SA,4)}, {v(acc(t,i),4)}")
            RD = []
            for ks in range(16):
                n = 16 * t + ks
                g1, g2, g3 = Seq(), Seq(), Seq()
                if ks == 12 and t < 3:
                    g1.wait(self.ht[t + 1], stw if t == 0 else None)
                    g1.i("s_barrier")
                if n + 3 < 64:
                    hk[n + 3] = rd_h(g2, n + 3)
                if ks == 13:
                    g3.i(f"ds_read_b128 {v(SA,4)}, {v(self.vRR)} offset:{t*512}")
                    g3.i(f"ds_read_b96 {v(KC[t&1],3)}, {v(self.vRR)} offset:{t*512+16}")
                if n + 1 < 64:
                    g3.wait(hk[n + 1])
                RD += [list(g1), list(g2), list(g3)]
            streams = [(RD, 0, 48)]
            D, W = Seq(), Seq()
            dm = ((0, 1), (2, 3, 4, 5, 6, 7), (19, 20, 21, 11, 12), (13, 14, 15, 16, 17, 18))[t]
            rd = ((8, 9, 10), (0, 1), (2, 3, 4, 5, 6, 7), ())[t]
            if t == 0:
                D.extend(HD)
            for n in dm:
                w2t[n] = self.dma_w2(D, n)
            for n in rd:
                W.wait(w2t[n])
                self.rd_w2(W, n)
            if t == 3:
                W.i(f"ds_read_b128 {v(RES,4)}, {v(self.vRES)}")
                W.i(f"ds_read_b128 {v(RES+4,4)}, {v(self.vRES)} offset:32768")
            streams += [(groups(D), 0, 48 if t < 3 else 36), (list(W), (2, 30, 6, 6)[t], (34, 46, 46, 40)[t])]
            if t == 0:
                streams += [(STL, 4, 34)]
            else:
                G, toks = gelu(t - 1, False)
                if toks:
                    h1st[0] = toks
                streams += [(costed(G), 2, 51)]
            S.extend(weave(M, *streams))
            self.stamp((4,))
        S.wait(h1st[0])
        self.set_flag(2)
        G, toks = gelu(3, True)
        S.extend(G)
        self.h1st = toks
        self.stamp((0, 4))

    def p4(self):
        S = self.S
        B = self.P3
        A0 = [B, B + 80]
        EX = B + 32
        OP = B + 56
        RES = self.RES
        t0 = self.P0
        vEW, vER, vOA = vA0, vA0 + 3, vA0 + 4
        S.wait(self.w2t[18])
        for n in range(11, 22):
            self.rd_w2(S, n)
        for tt in range(2):
            for h in range(4):
                r = A0[tt] + 2 * h
                S.i(f"v_lshlrev_b32 {v(r)}, 16, {v(RES+4*tt+h)}\nv_and_b32 {v(r+1)}, s{sHI}, {v(RES+4*tt+h)}")
                S.i(f"v_lshlrev_b32 {v(EX)}, 16, {v(self.B2R+h)}\nv_and_b32 {v(EX+1)}, s{sHI}, {v(self.B2R+h)}")
                S.i(f"v_pk_add_f32 {v(r,2)}, {v(r,2)}, {v(EX,2)}")
            for k in range(4):
                S.i(f"v_mov_b64 {v(A0[tt]+8+2*k,2)}, 0")
        for p in (1, 2, 3):
            S.i(f"s_xor_b32 s{sT2}, s{sWV}, {p}\ns_mul_i32 s{sT2}, s{sT2}, 6144\ns_add_u32 s{sT2}, s{sT2}, {LDS_B + (p-1)*2048}\nv_add_u32 {v(vEW+p-1)}, s{sT2}, {v(vL16)}")
        S.i(f"s_lshl_b32 s{sT2}, s{sLW3}, 1\ns_add_u32 s{sT2}, s{sT2}, {LDS_B}\nv_add_u32 {v(vER)}, s{sT2}, {v(vL16)}")
        S.i(f"v_and_b32 {v(t0)}, 31, {v(vL)}\nv_lshlrev_b32 {v(t0)}, 10, {v(t0)}\nv_lshl_add_u32 {v(vOA)}, {v(hh)}, 4, {v(t0)}")
        S.i(f"s_lshl_b32 s{sT1}, s{sJ}, 7\ns_lshl_b32 s{sT2}, s{sWV}, 5\ns_add_u32 s{sT1}, s{sT1}, s{sT2}\ns_add_u32 s{sT1}, s{sT1}, s{sXB}")
        S.i(f"v_and_b32 {v(vFP)}, 0x1c, {v(vFP)}\ns_lshl_b32 s{sT3}, s{sWV}, 7\ns_add_u32 s{sT3}, s{sT3}, s{sG}")
        S.wait(self.h1st)
        self.set_flag(3)
        S.i("s_barrier")
        self.stamp((5,))
        self.poll_loop(2, sT3)
        self.stamp((0, 5))
        hreg = lambda m: a(88 + 4 * (m % 26), 4)
        LD = []
        pollx = None
        for m in range(44):
            tt, n = divmod(m, 22)
            g = Seq()
            if m == 0:
                g.i(f"s_mov_b32 s{sT0}, s{sR2}")
            elif m == 22:
                lok = self.label("ok")
                g.wait(pollx)
                g.i(f"v_cmp_ne_u32 vcc, s{sTAG}, {v(vT2)}\ns_add_u32 s{sT0}, s{sR2}, 98304\ns_cbranch_vccz {lok}")
                g.opt_begin()
                keep, self.S = self.S, g
                self.poll_loop(3, sT3)
                self.S = keep
                g.opt_end()
                g.i(f"{lok}:")
            elif n & 3 == 0:
                g.i(f"s_add_u32 s{sT0}, s{sT0}, 4096")
            g.i(f"buffer_load_dwordx4 {hreg(m)}, {v(vL16)}, {srd(SWS)}, s{sT0} offen offset:{(n&3)*1024} sc1")
            if m == 13:
                pollx = g.i(f"buffer_load_dword {v(vT2)}, {v(vFP)}, {srd(SWS)}, s{sT3} offen offset:{G_FLAG + 3*512} sc1")
            LD.append(g)
        for g in LD[:self.PRE4]:
            S.extend(g)
        lp = self.PRE4

        def finish(tt, packed):
            a0, a1 = A0[tt], A0[tt] + 16
            Wr, Rs = Seq(), Seq()
            toks = []
            for p, src in ((1, a0 + 8), (2, a1), (3, a1 + 8)):
                for q in range(2):
                    toks.append(Wr.i(f"ds_write_b128 {v(vEW+p-1)}, {v(src+4*q,4)} offset:{tt*32768 + q*1024}"))
            g = Seq()
            g.wait(toks)
            g.i("s_barrier")
            for k in range(6):
                Rs.i(f"ds_read_b128 {v(EX+4*k,4)}, {v(vER)} offset:{tt*32768 + k*1024}")
            for p in range(3):
                for h in range(4):
                    r, e = a0 + 2 * h, EX + 8 * p + 2 * h
                    if packed:
                        Rs.i(f"v_pk_add_f32 {v(r,2)}, {v(r,2)}, {v(e,2)}")
                    else:
                        Rs.i(f"v_add_f32 {v(r)}, {v(r)}, {v(e)}\nv_add_f32 {v(r+1)}, {v(r+1)}, {v(e+1)}")
            for h in range(4):
                Rs.i(f"v_cvt_pk_bf16_f32 {v(OP+h)}, {v(a0+2*h)}, {v(a0+2*h+1)}")
            Rs.i(f"v_permlane32_swap_b32 {v(OP)}, {v(OP+2)}\nv_permlane32_swap_b32 {v(OP+1)}, {v(OP+3)}")
            if tt:
                Rs.i(f"s_add_u32 s{sT1}, s{sT1}, 32768")
            Rs.i(f"buffer_store_dwordx4 {v(OP,4)}, {v(vOA)}, {srd(SOUT)}, s{sT1} offen")
            return list(Wr), [list(g)] + list(Rs)

        for tt in range(2):
            M = Seq()
            a0, a1 = A0[tt], A0[tt] + 16
            for n in range(22):
                m = 22 * tt + n
                M.i(f"{MF32} {v(a0,16)}, {self.w2reg(n,0,4)}, {hreg(m)}, {v(a0,16)}")
                M.i(f"{MF32} {v(a1,16)}, {self.w2reg(n,4,4)}, {hreg(m)}, {'0' if n == 0 else v(a1,16)}")
                if lp < 44:
                    M.extend(LD[lp])
                    lp += 1
            if tt == 0:
                S.extend(M)
                self.stamp((5,))
            else:
                wr, rs = finish(0, False)
                S.extend(weave(M, (wr, 2, 14), (rs, 16, 34)))
        self.stamp((5,))
        wr, rs = finish(1, True)
        S.extend(wr)
        for x in rs:
            S.extend(x if isinstance(x, list) else [x])
        self.stamp((5,))

    def ln1_finalize(self, S, s1, s2, out):
        S.i(f"v_cndmask_b32 {v(s2)}, {v(s2)}, {v(s2+1)}, {sp(sM1)}")
        S.i(f"v_cndmask_b32 {v(s2)}, {v(s2)}, {v(s2+2)}, {sp(sM2)}")
        S.i(f"v_cndmask_b32 {v(s2)}, {v(s2)}, {v(s2+3)}, {sp(sM3)}")
        inv = f2u(1.0 / 512)
        S.i(f"v_mul_f32 {v(out+1)}, {inv:#x}, {v(s1)}")
        S.i(f"v_mul_f32 {v(out)}, {inv:#x}, {v(s2)}")
        S.i(f"v_fma_f32 {v(out)}, -{v(out+1)}, {v(out+1)}, {v(out)}")
        S.i(f"v_max_f32 {v(out)}, 0, {v(out)}")
        S.i(f"v_add_f32 {v(out)}, {f2u(1e-5):#x}, {v(out)}")
        S.i(f"v_rsq_f32 {v(out)}, {v(out)}")
        S.i(f"v_mul_f32 {v(out+1)}, {v(out+1)}, {v(out)}")

    def rd_resid(self, Q):
        t0, t1 = V0, V0 + 1
        Q.i(f"s_sub_u32 s{sT2}, s{sJ}, s{sXCD}\ns_and_b32 s{sT2}, s{sT2}, 7\ns_lshl_b32 s{sT2}, s{sT2}, 13\ns_lshl_b32 s{sT3}, s{sTT}, 12\ns_add_u32 s{sT2}, s{sT2}, s{sT3}")
        Q.i(f"v_and_b32 {v(t0)}, 31, {v(vL)}\nv_lshl_add_u32 {v(t0)}, {v(t0)}, 7, s{sT2}")
        Q.i(f"v_lshl_add_u32 {v(t0)}, {v(hh)}, 3, {v(t0)}")
        Q.i(f"s_lshl_b32 s{sT3}, s{sKH}, 2\nv_bfe_u32 {v(t1)}, {v(vL)}, 1, 3\nv_xor_b32 {v(t1)}, s{sT3}, {v(t1)}")
        Q.i(f"v_lshl_add_u32 {v(t0)}, {v(t1)}, 4, {v(t0)}")
        for q in range(1, 4):
            Q.i(f"v_xor_b32 {v(t0+q)}, {16*q}, {v(t0)}")
        for q in range(4):
            Q.i(f"ds_read_b64 {v(vXR+2*q,2)}, {v(t0+q)}")


HEAD = open('cdna_kernels/' + NAME + '.s.ref').read().split('; Override launch')[0]


def make(**kw):
    g = Gen(**kw)
    body, nn = finalize(g.build())
    txt = HEAD + f"""; Persistent fused kernel: 256 workgroups (one per CU), generated by a script of my own.
; @launch grid=(256,1,1) block=(256,1,1) lds=163840
.amdgcn_target "amdgcn-amd-amdhsa--gfx950"
.text
.globl {KN}
.p2align 8
.type {KN},@function
{KN}:
{body}.section .rodata,"a"
.p2align 6
.amdhsa_kernel {KN}
  .amdhsa_next_free_vgpr 512
  .amdhsa_next_free_sgpr 102
  .amdhsa_accum_offset 256
  .amdhsa_group_segment_fixed_size 0
  .amdhsa_kernarg_size 88
  .amdhsa_user_sgpr_count 2
  .amdhsa_user_sgpr_kernarg_segment_ptr 1
  .amdhsa_system_sgpr_workgroup_id_x 1
  .amdhsa_float_denorm_mode_32 3
.end_amdhsa_kernel
"""
    return txt, nn


if __name__ == "__main__":
    import argparse
    ap = argparse.ArgumentParser()
    ap.add_argument('-o', default='cdna_kernels/' + NAME + '.s')
    ap.add_argument('--stamp', action='store_true')
    ap.add_argument('--opt', default='')
    args = ap.parse_args()
    kw = dict((k, int(x)) for k, x in (p.split('=') for p in args.opt.split(',') if p))
    txt, nn = make(stamp=args.stamp, **kw)
    open(args.o, 'w').write(txt)
    print('wrote', args.o, 'nop states', nn, 'lines', txt.count('\n'))
```
